```python
import torch

def _softmax(x, axis=-1):
    return torch.softmax(x, dim=axis)
def _gelu(x):
    return torch.nn.functional.gelu(x, approximate="tanh")
def _silu(x):
    return torch.nn.functional.silu(x)
def _sigmoid(x):
    return torch.sigmoid(x)
def _layernorm(x, axis=-1, eps=1e-5):
    m = x.mean(dim=axis, keepdim=True)
    v = x.var(dim=axis, keepdim=True, unbiased=False)
    return (x - m) / torch.sqrt(v + eps)
def _scatter_add(tgt, idx, src, axis=0):
    return tgt.clone().index_add_(axis, idx, src)
def _segment_sum(src, seg, n):
    out = torch.zeros((n,) + src.shape[1:], dtype=src.dtype)
    return out.index_add_(0, seg, src)
def _pad(x, pw):
    flat = tuple(v for pair in reversed(pw) for v in pair)
    return torch.nn.functional.pad(x, flat)

kernel_name = 'gated_mix__linear_kernel_hedgehog__softmax_full_mha__prompt'

def setup_inputs():

    _w = (lambda a: (lambda t: t.to(torch.bfloat16) if t.is_floating_point() else t)(torch.as_tensor(a)))
    def _A_setup():
        B, S, D, H = 1, 2048, 512, 32
        Dh = D // H
        return {
            "x": _w((lambda *s: torch.randn(*s, dtype=torch.bfloat16) * 0.05)(B, S, D)),
            "wqkv": _w((lambda *s: torch.randn(*s, dtype=torch.bfloat16) * 3.2)(D, 3 * D)),
            "w_phi": _w((lambda *s: torch.randn(*s, dtype=torch.bfloat16) * 3.2)(H, Dh, Dh) * (Dh ** -0.5)),
            "wo": _w((lambda *s: torch.randn(*s, dtype=torch.bfloat16) * 0.05)(D, D)),
        }
    _A_in = _A_setup()

    def _B_setup():
        B, S, D = 1, 2048, 512
        return {
            "x": _w((lambda *s: torch.randn(*s, dtype=torch.bfloat16) * 0.05)(B, S, D)),
            "wqkv": _w((lambda *s: torch.randn(*s, dtype=torch.bfloat16) * 1.6)(D, 3 * D)),
            "wo": _w((lambda *s: torch.randn(*s, dtype=torch.bfloat16) * 0.05)(D, D)),
        }
    _B_in = _B_setup()

    return {
        "A_x": _A_in["x"],
        "A_wqkv": _A_in["wqkv"],
        "A_w_phi": _A_in["w_phi"],
        "A_wo": _A_in["wo"],
        "B_x": _B_in["x"],
        "B_wqkv": _B_in["wqkv"],
        "B_wo": _B_in["wo"],
        "gate_w": _w((lambda *s: torch.randn(*s, dtype=torch.bfloat16) * 0.05)(512) * 16.0),
    }

def reference(A_x, A_wqkv, A_w_phi, A_wo, B_x, B_wqkv, B_wo, gate_w):
    def _A_ref(x, wqkv, w_phi, wo):
        B, S, D = x.shape
        H = 32; Dh = D // H
        qkv = (lambda x, *d: x.permute(*d))((x @ wqkv).reshape(B, S, 3, H, Dh), 2, 0, 3, 1, 4)
        q, k, v = qkv[0], qkv[1], qkv[2]
        pq = torch.einsum("bhsd,hdf->bhsf", q, w_phi)
        pk = torch.einsum("bhsd,hdf->bhsf", k, w_phi)
        phi_q = torch.concatenate([_softmax(pq, axis=-1), _softmax(-pq, axis=-1)], axis=-1)
        phi_k = torch.concatenate([_softmax(pk, axis=-1), _softmax(-pk, axis=-1)], axis=-1)
        kv = torch.einsum("bhsf,bhsd->bhfd", phi_k, v)
        z  = torch.einsum("bhsf->bhf", phi_k)
        num = torch.einsum("bhqf,bhfd->bhqd", phi_q, kv)
        den = torch.einsum("bhqf,bhf->bhq", phi_q, z)[..., None] + 1e-6
        o = num / den
        return (lambda x, *d: x.permute(*d))(o, 0, 2, 1, 3).reshape(B, S, D) @ wo

    def _B_ref(x, wqkv, wo):
        B, S, D = x.shape
        H = 32; Dh = D // H
        qkv = (lambda x, *d: x.permute(*d))((x @ wqkv).reshape(B, S, 3, H, Dh), 2, 0, 3, 1, 4)
        q, k, v = qkv[0], qkv[1], qkv[2]
        scale = Dh ** -0.5
        scores = torch.einsum("bhqd,bhkd->bhqk", q, k) * scale
        p = _softmax(scores, axis=-1)
        o = torch.einsum("bhqk,bhkd->bhqd", p, v)
        return (lambda x, *d: x.permute(*d))(o, 0, 2, 1, 3).reshape(B, S, D) @ wo

    x = A_x
    g = _sigmoid((x * gate_w).sum(-1, keepdims=True))
    a = _A_ref(x, A_wqkv, A_w_phi, A_wo)
    b = _B_ref(x, B_wqkv, B_wo)
    return g * a + (1 - g) * b
```

```python
import re

_REG = re.compile(r'^(-|\|)?(abs\()?(v|a|s)(\d+|\[(\d+):(\d+)\])\)?\|?$')


def parse_reg(tok):
    tok = tok.strip()
    if tok in ('vcc',):
        return {('s', 106), ('s', 107)}
    if tok == 'vcc_lo':
        return {('s', 106)}
    if tok == 'vcc_hi':
        return {('s', 107)}
    if tok == 'exec':
        return {('s', 126), ('s', 127)}
    if tok == 'exec_lo':
        return {('s', 126)}
    if tok == 'exec_hi':
        return {('s', 127)}
    if tok == 'm0':
        return {('s', 124)}
    m = _REG.match(tok)
    if not m:
        return set()
    cls = m.group(3)
    if m.group(5) is not None:
        return {(cls, i) for i in range(int(m.group(5)), int(m.group(6)) + 1)}
    return {(cls, int(m.group(4)))}


TRANS = ('v_exp_', 'v_log_', 'v_rcp_', 'v_rsq_', 'v_sqrt_', 'v_sin_', 'v_cos_')


class Inst:
    __slots__ = ('text', 'op', 'ops', 'mods', 'kind', 'wr', 'rd', 'srcc', 'srcab', 'passes', 'is_trans', 'is_dpp',
                 'is_sdwa', 'store_data', 'sgpr_rd', 'label', 'target', 'nopn', 'is_ldsdma', 'comment')

    def __init__(self, text):
        self.comment = ''
        if ';' in text:
            text, self.comment = text.split(';', 1)
        text = text.strip()
        self.text = text
        self.label = None
        self.target = None
        self.wr = set()
        self.rd = set()
        self.srcc = set()
        self.srcab = set()
        self.passes = 0
        self.is_trans = False
        self.is_dpp = False
        self.is_sdwa = False
        self.is_ldsdma = False
        self.store_data = set()
        self.nopn = 0
        if text.endswith(':'):
            self.kind = 'label'
            self.label = text[:-1]
            self.op = ''
            return
        if text == '' or text.startswith('.'):
            self.kind = 'dir'
            self.op = ''
            return
        sp = text.split(None, 1)
        self.op = op = sp[0]
        rest = sp[1] if len(sp) > 1 else ''
        parts = []
        depth = 0
        cur = ''
        for ch in rest:
            if ch in '[(':
                depth += 1
            if ch in '])':
                depth -= 1
            if ch == ',' and depth == 0:
                parts.append(cur.strip())
                cur = ''
            else:
                cur += ch
        if cur.strip():
            parts.append(cur.strip())
        mods = []
        if parts:
            lp = parts[-1].split()
            parts[-1] = lp[0] if lp else ''
            mods = lp[1:]
        self.ops = parts
        self.mods = mods
        R = [parse_reg(p) for p in parts]
        allmods = ' '.join(mods)
        if op.startswith('v_mfma') or op.startswith('v_smfma'):
            self.kind = 'mfma'
            self.wr = set(R[0])
            self.srcab = R[1] | R[2]
            self.srcc = set(R[3]) if len(R) > 3 else set()
            self.rd = self.srcab | self.srcc
            if '32x32x16' in op or '32x32x8' in op:
                self.passes = 8
            elif '16x16x32' in op or '16x16x16' in op:
                self.passes = 4
            else:
                raise ValueError('unknown mfma ' + op)
        elif op.startswith('v_'):
            self.kind = 'valu'
            self.is_trans = op.startswith(TRANS)
            self.is_dpp = op.endswith('_dpp') or 'row_' in allmods or 'quad_perm' in allmods
            self.is_sdwa = op.endswith('_sdwa') or 'op_sel' in allmods
            if op.startswith('v_permlane') and 'swap' in op:
                self.wr = R[0] | R[1]
                self.rd = R[0] | R[1]
            elif op.startswith('v_cmp'):
                self.wr = set(R[0])
                for r in R[1:]:
                    self.rd |= r
                if op.startswith('v_cmpx'):
                    self.wr |= parse_reg('exec')
            elif op.startswith(('v_add_co', 'v_sub_co', 'v_subrev_co', 'v_addc_co', 'v_subb_co', 'v_mad_u64')):
                self.wr = R[0] | R[1]
                for r in R[2:]:
                    self.rd |= r
            elif op == 'v_nop':
                pass
            else:
                self.wr = set(R[0])
                for r in R[1:]:
                    self.rd |= r
                if op.startswith(('v_fmac', 'v_dot2c', 'v_pk_fmac', 'v_writelane')) or self.is_dpp or self.is_sdwa \
                        or 'mixhi' in op or 'mixlo' in op:
                    self.rd |= R[0]
        elif op.startswith('ds_'):
            self.kind = 'ds'
            if op.startswith(('ds_read', 'ds_bpermute', 'ds_permute', 'ds_swizzle')):
                self.wr = set(R[0])
                for r in R[1:]:
                    self.rd |= r
            else:
                for r in R:
                    self.rd |= r
        elif op.startswith(('buffer_', 'global_', 'flat_', 'scratch_')):
            self.kind = 'vmem'
            if op in ('buffer_wbl2', 'buffer_inv'):
                pass
            elif 'lds' in mods or '_lds_' in op:
                self.is_ldsdma = True
                for r in R:
                    self.rd |= r
                self.rd |= parse_reg('m0')
            elif '_load' in op:
                self.wr = set(R[0])
                for r in R[1:]:
                    self.rd |= r
                if 'd16' in op:
                    self.rd |= R[0]
            elif '_store' in op:
                for r in R:
                    self.rd |= r
                data = R[0] if op.startswith('buffer_') else R[1]
                if 'x3' in op or 'x4' in op:
                    self.store_data = set(data)
            elif '_atomic' in op:
                for r in R:
                    self.rd |= r
                if 'sc0' in mods:
                    self.wr = set(R[0])
            else:
                raise ValueError('unknown vmem ' + op)
        elif op.startswith('s_'):
            self.kind = 'salu'
            if op == 's_nop':
                self.nopn = int(parts[0], 0)
            elif op.startswith(('s_cbranch', 's_branch')):
                self.target = parts[0]
                self.kind = 'branch'
            elif op in ('s_waitcnt', 's_barrier', 's_endpgm', 's_sleep', 's_setprio'):
                pass
            elif op.startswith(('s_cmp', 's_bitcmp')):
                for r in R:
                    self.rd |= r
            elif op.startswith(('s_load', 's_buffer_load')):
                self.kind = 'smem'
                self.wr = set(R[0])
                for r in R[1:]:
                    self.rd |= r
            else:
                self.wr = set(R[0]) if R else set()
                for r in R[1:]:
                    self.rd |= r
                if 'saveexec' in op:
                    self.wr |= parse_reg('exec')
        else:
            raise ValueError('unknown op: ' + text)

    def states(self):
        if self.kind in ('label', 'dir'):
            return 0
        if self.op == 's_nop':
            return self.nopn + 1
        return 1


def vg(s):
    return {r for r in s if r[0] in 'va'}


def sg(s):
    return {r for r in s if r[0] == 's'}


def required(p, c):
    need = 0
    if p.kind == 'valu':
        pw_v = vg(p.wr)
        pw_s = sg(p.wr)
        if pw_v:
            if c.kind == 'mfma' and pw_v & c.rd:
                need = max(need, 2)
            if c.kind == 'valu':
                if c.op.startswith('v_permlane') and pw_v & c.rd:
                    need = max(need, 2)
                if c.is_dpp and pw_v & c.rd:
                    need = max(need, 2)
                if c.op.startswith(('v_readlane', 'v_readfirstlane')) and pw_v & c.rd:
                    need = max(need, 1)
                if p.is_trans and not c.is_trans and pw_v & c.rd:
                    need = max(need, 1)
                if p.is_sdwa and pw_v & (c.rd | c.wr):
                    need = max(need, 1)
            if p.is_trans and c.kind in ('ds', 'vmem') and pw_v & c.rd:
                need = max(need, 1)
        if pw_s:
            if c.kind in ('valu', 'mfma') and pw_s & c.rd:
                need = max(need, 4 if c.op.startswith(('v_readlane', 'v_writelane')) else 2)
            if c.kind == 'valu' and c.op.startswith('v_cndmask') and len(c.ops) == 3 and pw_s & parse_reg('vcc'):
                need = max(need, 2)
            if c.kind == 'vmem' and pw_s & c.rd:
                need = max(need, 5)
            if c.kind in ('salu', 'branch', 'smem') and pw_s & c.rd:
                need = max(need, 1)
            if c.kind == 'branch' and 'vcc' in c.op and pw_s & parse_reg('vcc'):
                need = max(need, 5)
            if pw_s & parse_reg('exec'):
                if c.kind == 'mfma':
                    need = max(need, 4)
                if c.kind == 'valu' and (c.is_dpp or c.op.startswith(('v_permlane', 'v_readlane', 'v_readfirstlane', 'v_writelane'))):
                    need = max(need, 5)
    elif p.kind == 'mfma':
        big = {8: 12, 4: 8}[p.passes]
        if c.kind == 'mfma':
            if p.wr & c.srcab:
                need = max(need, big)
            if p.wr & c.srcc:
                if p.wr == c.srcc and p.passes == c.passes:
                    pass
                else:
                    need = max(need, {8: 10, 4: 6}[p.passes])
            if (p.wr & c.wr) and not (p.wr == c.srcc and p.passes == c.passes):
                need = max(need, {8: 10, 4: 6}[p.passes])
        elif c.kind in ('valu', 'ds', 'vmem'):
            if p.wr & (c.rd | c.wr):
                need = max(need, big)
            if p.srcc & c.wr:
                need = max(need, {8: 7, 4: 3}[p.passes])
    elif p.kind == 'salu':
        if ('s', 124) in p.wr and (c.is_ldsdma or (c.kind == 'ds' and 'addtid' in c.op)):
            need = max(need, 1)
    elif p.kind == 'vmem':
        if p.store_data and c.kind in ('valu', 'mfma', 'ds', 'vmem') and p.store_data & c.wr:
            need = max(need, 2)
    return need


class Prog:
    def __init__(self):
        self.ins = []
        self.nops_added = 0

    def __call__(self, text):
        for line in text.split('\n'):
            line = line.strip()
            if not line:
                continue
            if line.startswith(';'):
                i = Inst('')
                i.comment = line[1:]
                self.ins.append(i)
                continue
            self.ins.append(Inst(line))

    def label(self, name):
        self.ins.append(Inst(name + ':'))

    def hazard_pass(self, verbose=False):
        MAXW = 13
        changed = True
        it = 0
        while changed:
            changed = False
            it += 1
            ins = self.ins
            n = len(ins)
            labels = {x.label: k for k, x in enumerate(ins) if x.kind == 'label'}
            preds = [[] for _ in range(n)]
            for k, x in enumerate(ins):
                if k + 1 < n and not (x.op in ('s_branch', 's_endpgm')):
                    preds[k + 1].append(k)
                if x.kind == 'branch':
                    if x.target in labels:
                        preds[labels[x.target]].append(k)
            out = []
            insert_at = {}
            for k, c in enumerate(ins):
                if c.kind in ('label', 'dir'):
                    continue
                worst = 0
                stack = [(q, 0) for q in preds[k]]
                seen = {}
                while stack:
                    q, dist = stack.pop()
                    if dist >= MAXW:
                        continue
                    if q in seen and seen[q] <= dist:
                        continue
                    seen[q] = dist
                    p = ins[q]
                    if p.kind not in ('label', 'dir') and p.op != 's_nop':
                        need = required(p, c)
                        if need > dist:
                            worst = max(worst, need - dist)
                            if verbose:
                                print(f'hazard: [{p.text}] -> [{c.text}] need {need} have {dist}')
                    d2 = dist + p.states()
                    for r in preds[q]:
                        stack.append((r, d2))
                if worst:
                    insert_at[k] = worst
            if insert_at:
                changed = True
                for k, x in enumerate(ins):
                    if k in insert_at:
                        w = insert_at[k]
                        self.nops_added += w
                        while w > 0:
                            t = min(w, 16)
                            nop = Inst(f's_nop {t - 1}')
                            nop.comment = ' auto'
                            out.append(nop)
                            w -= t
                        for j in range(k + 1, min(k + MAXW + 1, n)):
                            insert_at.pop(j, None)
                    out.append(x)
                self.ins = out
            if it > 200:
                raise RuntimeError('hazard pass did not converge')

    def text(self):
        out = []
        for x in self.ins:
            if x.kind == 'label':
                out.append(x.text)
            elif x.kind == 'dir' and x.text == '':
                out.append('    ;' + x.comment)
            else:
                s = '    ' + x.text
                if x.comment:
                    s += ' ;' + x.comment
                out.append(s)
        return '\n'.join(out) + '\n'

    def max_regs(self):
        mv = ma = ms = -1
        for x in self.ins:
            for (c, i) in (x.wr | x.rd) if x.kind not in ('label', 'dir') else ():
                if c == 'v':
                    mv = max(mv, i)
                elif c == 'a':
                    ma = max(ma, i)
                elif c == 's' and i < 102:
                    ms = max(ms, i)
        return mv, ma, ms


class RegAlloc:
    def __init__(self, cls, start, limit):
        self.cls = cls
        self.next = start
        self.limit = limit

    def alloc(self, n=1, align=1):
        a = (self.next + align - 1) // align * align
        self.next = a + n
        assert self.next <= self.limit, f'out of {self.cls} regs'
        return a


def V(i, n=1):
    return f'v{i}' if n == 1 else f'v[{i}:{i + n - 1}]'


def A(i, n=1):
    return f'a{i}' if n == 1 else f'a[{i}:{i + n - 1}]'


def S(i, n=1):
    return f's{i}' if n == 1 else f's[{i}:{i + n - 1}]'


def f2u(x):
    import struct
    return struct.unpack('<I', struct.pack('<f', x))[0]


def kernel_desc(name, nvgpr, nagpr, nsgpr):
    acc = (nvgpr + 3) // 4 * 4
    acc = max(acc, 4)
    nf = acc + nagpr if nagpr else nvgpr
    return f'''.section .rodata,"a"
.p2align 6
.amdhsa_kernel {name}
  .amdhsa_next_free_vgpr {nf}
  .amdhsa_next_free_sgpr {nsgpr}
  .amdhsa_accum_offset {acc}
  .amdhsa_group_segment_fixed_size 0
  .amdhsa_kernarg_size 88
  .amdhsa_user_sgpr_count 2
  .amdhsa_user_sgpr_kernarg_segment_ptr 1
  .amdhsa_system_sgpr_workgroup_id_x 1
.end_amdhsa_kernel
.text
'''
```

```python
import math
import sys
import os
sys.path.insert(0, os.path.dirname(__file__))
from asmlib import Prog, RegAlloc, V, A, S, f2u, kernel_desc

NAME = 'gated_mix__linear_kernel_hedgehog__softmax_full_mha__prompt'

WS_Q = 0x000000
WS_K = 0x200000
WS_V = 0x400000
WS_QA = 0x600000
WS_KVP = 0x800000
WS_O = 0x900000
WS_WO = 0xD00000
WS_G = 0xE00000
WS_SIZE = 0xE02000

LOG2E = math.log2(math.e)
QSCALE = 0.25 * LOG2E

SLOT = 45824
WOFF = 32768
SUBR = 2176
HO = 3 * SLOT
LDS1 = HO + 4 * 6144
L_K = 0
L_V = 65536
VSTR = 1040
L_KVS = L_V + 64 * VSTR
LDS2 = L_KVS + 2048

sKA = 0
sWG = 2
P_X, P_AW, P_PHI, P_AWO = 4, 6, 8, 10
P_BX, P_BW, P_BWO, P_GW = 12, 14, 16, 18
P_OUT, P_DBG, P_WS = 20, 22, 24
R_X, R_W, R_WS, R_PHI, R_WO, R_G, R_OUT, R_DBG = 28, 32, 36, 40, 44, 48, 52, 56
sH, sQB, sW, sT0, sT1, sT2, sT3, sL2E, sRT, sTI = 60, 61, 62, 63, 64, 65, 66, 67, 68, 69
sM0, sOFF, sOFF2, sMSK = 70, 71, 72, 74
sCNT, sST, sCH = 76, 77, 78
sEX = 80


def srd(p, r, ptr, size):
    p(f's_mov_b32 {S(r)}, {S(ptr)}')
    p(f's_and_b32 {S(r + 1)}, {S(ptr + 1)}, 0xffff')
    p(f's_mov_b32 {S(r + 2)}, {size}')
    p(f's_mov_b32 {S(r + 3)}, 0x00020000')


def common_prologue(p, nwg, endlabel):
    p(f's_cmp_ge_u32 {S(sWG)}, {nwg}')
    p(f's_cbranch_scc1 {endlabel}')
    p(f's_load_dwordx8 {S(4, 8)}, {S(0, 2)}, 0')
    p(f's_load_dwordx8 {S(12, 8)}, {S(0, 2)}, 32')
    p(f's_load_dwordx4 {S(20, 4)}, {S(0, 2)}, 64')
    p(f's_load_dwordx2 {S(24, 2)}, {S(0, 2)}, 80')


def head_qb(p):
    p(f's_and_b32 {S(sT0)}, {S(sWG)}, 7')
    p(f's_lshr_b32 {S(sT1)}, {S(sWG)}, 3')
    p(f's_lshl_b32 {S(sH)}, {S(sT0)}, 2')
    p(f's_and_b32 {S(sT2)}, {S(sT1)}, 3')
    p(f's_add_u32 {S(sH)}, {S(sH)}, {S(sT2)}')
    p(f's_lshr_b32 {S(sQB)}, {S(sT1)}, 2')


def softmax_pair(p, x, Fp, Fm, t):
    c = t
    mx, mn, u0, u1 = t + 4, t + 5, t + 6, t + 7
    em = t + 8
    for i in range(4):
        p(f'v_cvt_pk_bf16_f32 {V(c + i)}, {V(x + 2 * i)}, {V(x + 2 * i + 1)}')
    for i in range(4):
        p(f'v_lshlrev_b32 {V(x + 2 * i)}, 16, {V(c + i)}')
        p(f'v_and_b32 {V(x + 2 * i + 1)}, 0xffff0000, {V(c + i)}')
    p(f'v_max3_f32 {V(mx)}, {V(x)}, {V(x + 1)}, {V(x + 2)}')
    p(f'v_min3_f32 {V(mn)}, {V(x)}, {V(x + 1)}, {V(x + 2)}')
    p(f'v_max3_f32 {V(mx)}, {V(mx)}, {V(x + 3)}, {V(x + 4)}')
    p(f'v_min3_f32 {V(mn)}, {V(mn)}, {V(x + 3)}, {V(x + 4)}')
    p(f'v_max3_f32 {V(mx)}, {V(mx)}, {V(x + 5)}, {V(x + 6)}')
    p(f'v_min3_f32 {V(mn)}, {V(mn)}, {V(x + 5)}, {V(x + 6)}')
    p(f'v_max_f32 {V(mx)}, {V(mx)}, {V(x + 7)}')
    p(f'v_min_f32 {V(mn)}, {V(mn)}, {V(x + 7)}')
    p(f'v_mov_b32 {V(u0)}, {V(mx)}')
    p(f'v_mov_b32 {V(u1)}, {V(mn)}')
    p(f'v_permlane32_swap_b32 {V(mx)}, {V(u0)}')
    p(f'v_permlane32_swap_b32 {V(mn)}, {V(u1)}')
    p(f'v_max_f32 {V(mx)}, {V(mx)}, {V(u0)}')
    p(f'v_min_f32 {V(mn)}, {V(mn)}, {V(u1)}')
    p(f'v_mul_f32 {V(mx)}, {hex(f2u(-LOG2E))}, {V(mx)}')
    p(f'v_mul_f32 {V(mn)}, {hex(f2u(LOG2E))}, {V(mn)}')
    for i in range(8):
        p(f'v_fma_f32 {V(em + i)}, -{V(x + i)}, {S(sL2E)}, {V(mn)}')
        p(f'v_fma_f32 {V(x + i)}, {V(x + i)}, {S(sL2E)}, {V(mx)}')
    for i in range(8):
        p(f'v_exp_f32 {V(x + i)}, {V(x + i)}')
        p(f'v_exp_f32 {V(em + i)}, {V(em + i)}')
    sp, sm = mx, mn
    p(f'v_add_f32 {V(sp)}, {V(x)}, {V(x + 1)}')
    p(f'v_add_f32 {V(sm)}, {V(em)}, {V(em + 1)}')
    p(f'v_add_f32 {V(u0)}, {V(x + 2)}, {V(x + 3)}')
    p(f'v_add_f32 {V(u1)}, {V(em + 2)}, {V(em + 3)}')
    p(f'v_add_f32 {V(sp)}, {V(sp)}, {V(u0)}')
    p(f'v_add_f32 {V(sm)}, {V(sm)}, {V(u1)}')
    p(f'v_add_f32 {V(u0)}, {V(x + 4)}, {V(x + 5)}')
    p(f'v_add_f32 {V(u1)}, {V(em + 4)}, {V(em + 5)}')
    p(f'v_add_f32 {V(sp)}, {V(sp)}, {V(u0)}')
    p(f'v_add_f32 {V(sm)}, {V(sm)}, {V(u1)}')
    p(f'v_add_f32 {V(u0)}, {V(x + 6)}, {V(x + 7)}')
    p(f'v_add_f32 {V(u1)}, {V(em + 6)}, {V(em + 7)}')
    p(f'v_add_f32 {V(sp)}, {V(sp)}, {V(u0)}')
    p(f'v_add_f32 {V(sm)}, {V(sm)}, {V(u1)}')
    p(f'v_mov_b32 {V(u0)}, {V(sp)}')
    p(f'v_mov_b32 {V(u1)}, {V(sm)}')
    p(f'v_permlane32_swap_b32 {V(sp)}, {V(u0)}')
    p(f'v_permlane32_swap_b32 {V(sm)}, {V(u1)}')
    p(f'v_add_f32 {V(sp)}, {V(sp)}, {V(u0)}')
    p(f'v_add_f32 {V(sm)}, {V(sm)}, {V(u1)}')
    p(f'v_rcp_f32 {V(sp)}, {V(sp)}')
    p(f'v_rcp_f32 {V(sm)}, {V(sm)}')
    for i in range(8):
        p(f'v_mul_f32 {V(x + i)}, {V(x + i)}, {V(sp)}')
        p(f'v_mul_f32 {V(em + i)}, {V(em + i)}, {V(sm)}')
    for i in range(4):
        p(f'v_cvt_pk_bf16_f32 {V(Fp + i)}, {V(x + 2 * i)}, {V(x + 2 * i + 1)}')
        p(f'v_cvt_pk_bf16_f32 {V(Fm + i)}, {V(em + 2 * i)}, {V(em + 2 * i + 1)}')


def load_wphi(p, vPHI, vt, vlane):
    p(f'v_and_b32 {V(vt)}, 15, {V(vlane)}')
    p(f'v_lshlrev_b32 {V(vt)}, 1, {V(vt)}')
    p(f'v_lshrrev_b32 {V(vt + 1)}, 5, {V(vlane)}')
    p(f'v_lshl_add_u32 {V(vt)}, {V(vt + 1)}, 7, {V(vt)}')
    p(f's_lshl_b32 {S(sT0)}, {S(sH)}, 9')
    for j in range(8):
        d = (j & 3) + 8 * (j >> 2)
        p(f'buffer_load_ushort {V(vPHI + j)}, {V(vt)}, {S(R_PHI, 4)}, {S(sT0)} offen offset:{d * 32}')


def combine8(p, r):
    for i in range(4):
        p(f'v_lshl_or_b32 {V(r + i)}, {V(r + 2 * i + 1)}, 16, {V(r + 2 * i)}')


def gen_k1(fused=False):
    p = Prog()
    va = RegAlloc('v', 1, 256)
    vLANE = va.alloc()
    vL16 = va.alloc()
    vT = va.alloc(8, 2)
    vPHI = va.alloc(8, 4)
    vIP = va.alloc(4, 4)
    vIM = va.alloc(4, 4)
    PK = va.alloc(24, 4)
    Qf, Kf, QAf, KAf, Vp = PK, PK + 4, PK + 8, PK + 12, PK + 16
    base = va.next
    vXa = va.alloc(12)
    vWa = va.alloc(9)
    FR = [va.alloc(20, 4), va.alloc(20, 4)]
    ACC = va.alloc(96, 4)
    PK1 = va.alloc(24, 4)
    vb = RegAlloc('v', base, 256)
    vXoA, vXoB, vWo = vb.alloc(), vb.alloc(), vb.alloc()
    vGo, vRo = vb.alloc(), vb.alloc()
    GX = vb.alloc(8, 4)
    GW = vb.alloc(8, 4)
    WR = vb.alloc(8, 4)
    vc = RegAlloc('v', base, 256)
    D1 = vc.alloc(16, 4)
    D2 = vc.alloc(16, 4)
    KV = vc.alloc(16, 4)
    Fp, Fm = vc.alloc(4, 4), vc.alloc(4, 4)
    G = vc.alloc(8, 4)
    VA = vc.alloc(8, 4)
    TMP = vc.alloc(24, 4)
    vO1, vO2 = vc.alloc(), vc.alloc()

    END = 'L_k1_end'
    common_prologue(p, 256, END)
    head_qb(p)
    p(f'v_and_b32 {V(vLANE)}, 63, v0')
    p(f'v_lshrrev_b32 {V(vT)}, 6, v0')
    p(f'v_lshlrev_b32 {V(vL16)}, 4, {V(vLANE)}')
    p(f'v_readfirstlane_b32 {S(sW)}, {V(vT)}')
    p(f's_mov_b32 {S(sL2E)}, {hex(f2u(LOG2E))}')
    p('s_waitcnt lgkmcnt(0)')
    srd(p, R_X, P_X, 2048 * 1024)
    srd(p, R_WS, P_WS, WS_SIZE)
    srd(p, R_PHI, P_PHI, 16384)
    srd(p, R_G, P_GW, 1024)
    p(f's_and_b32 {S(sT0)}, {S(sW)}, 3')
    p(f's_lshl_b32 {S(sT0)}, {S(sT0)}, 1')
    p(f's_lshr_b32 {S(sT1)}, {S(sW)}, 2')
    p(f's_add_u32 {S(sRT)}, {S(sT0)}, {S(sT1)}')
    p(f's_lshl_b32 {S(sT0)}, {S(sQB)}, 3')
    p(f's_add_u32 {S(sTI)}, {S(sT0)}, {S(sRT)}')
    p(f's_cmp_ge_u32 {S(sW)}, 4')
    p('s_cbranch_scc1 L_k1_loader')

    def consts():
        load_wphi(p, vPHI, vT, vLANE)
        p(f'v_and_b32 {V(vT)}, 31, {V(vLANE)}')
        p(f'v_lshrrev_b32 {V(vT + 1)}, 5, {V(vLANE)}')
        p(f'v_lshlrev_b32 {V(vT + 1)}, 2, {V(vT + 1)}')
        p(f'v_sub_u32 {V(vT)}, {V(vT)}, {V(vT + 1)}')
        p(f'v_mov_b32 {V(vT + 2)}, 0x3f80')
        p(f'v_mov_b32 {V(vT + 3)}, 0x3f800000')
        for (dst, add) in ((vIP, 0), (vIM, 16)):
            for r in range(4):
                j0 = 2 * r
                f0 = (j0 & 3) + 8 * (j0 >> 2) + add
                p(f'v_cmp_eq_u32 vcc, {f0}, {V(vT)}')
                p(f'v_cndmask_b32 {V(dst + r)}, 0, {V(vT + 2)}, vcc')
                p(f'v_cmp_eq_u32 vcc, {f0 + 1}, {V(vT)}')
                p(f'v_cndmask_b32 {V(dst + r)}, {V(dst + r)}, {V(vT + 3)}, vcc')

    consts()
    p(f'v_and_b32 {V(vT)}, 31, {V(vLANE)}')
    p(f'v_lshrrev_b32 {V(vT + 1)}, 5, {V(vLANE)}')
    p(f'v_bfe_u32 {V(vT + 2)}, {V(vT)}, 1, 3')
    p(f'v_lshlrev_b32 {V(vT + 3)}, 7, {V(vT)}')
    p(f's_lshl_b32 {S(sT0)}, {S(sW)}, 13')
    p(f'v_add_u32 {V(vT + 3)}, {S(sT0)}, {V(vT + 3)}')
    for i in range(4):
        p(f'v_or_b32 {V(vT + 4)}, {2 * i}, {V(vT + 1)}')
        p(f'v_xor_b32 {V(vT + 4)}, {V(vT + 4)}, {V(vT + 2)}')
        p(f'v_lshl_add_u32 {V(vXa + i)}, {V(vT + 4)}, 4, {V(vT + 3)}')
        p(f'v_add_u32 {V(vXa + 4 + i)}, {SLOT}, {V(vXa + i)}')
        p(f'v_add_u32 {V(vXa + 8 + i)}, {2 * SLOT}, {V(vXa + i)}')
    SR = [(0, 1), (3, 4), (2, 5)]
    p(f'v_and_b32 {V(vT)}, 15, {V(vLANE)}')
    p(f'v_lshlrev_b32 {V(vT)}, 3, {V(vT)}')
    p(f'v_lshrrev_b32 {V(vT + 1)}, 5, {V(vLANE)}')
    p(f'v_lshl_add_u32 {V(vT)}, {V(vT + 1)}, 8, {V(vT)}')
    p(f'v_bfe_u32 {V(vT + 2)}, {V(vLANE)}, 4, 1')
    for T in range(3):
        d = (SR[T][1] - SR[T][0]) * SUBR
        p(f'v_mul_u32_u24 {V(vT + 3)}, {d}, {V(vT + 2)}')
        p(f'v_add_u32 {V(vT + 3)}, {V(vT + 3)}, {V(vT)}')
        for sl in range(3):
            p(f'v_add_u32 {V(vWa + 3 * sl + T)}, {sl * SLOT + WOFF + SR[T][0] * SUBR}, {V(vT + 3)}')

    def reads(s):
        c, i = s // 4, s % 4
        sl = c % 3
        F = FR[s & 1]
        p(f'ds_read_b128 {V(F, 4)}, {V(vXa + 4 * sl + i)}')
        p(f'ds_read_b64_tr_b16 {V(F + 8, 2)}, {V(vWa + 3 * sl + 0)} offset:{i * 512}')
        p(f'ds_read_b64_tr_b16 {V(F + 10, 2)}, {V(vWa + 3 * sl + 0)} offset:{i * 512 + 128}')
        p(f'ds_read_b128 {V(F + 4, 4)}, {V(vXa + 4 * sl + i)} offset:4096')
        for T in (1, 2):
            p(f'ds_read_b64_tr_b16 {V(F + 8 + 4 * T, 2)}, {V(vWa + 3 * sl + T)} offset:{i * 512}')
            p(f'ds_read_b64_tr_b16 {V(F + 10 + 4 * T, 2)}, {V(vWa + 3 * sl + T)} offset:{i * 512 + 128}')

    def mfmas(s):
        F = FR[s & 1]
        for T in range(3):
            for rt in range(2):
                acc = ACC + (rt * 3 + T) * 16
                c = '0' if s == 0 else V(acc, 16)
                X = V(F + 4 * rt, 4)
                W = V(F + 8 + 4 * T, 4)
                if T < 2:
                    p(f'v_mfma_f32_32x32x16_bf16 {V(acc, 16)}, {W}, {X}, {c}')
                else:
                    p(f'v_mfma_f32_32x32x16_bf16 {V(acc, 16)}, {X}, {W}, {c}')

    p('s_barrier')
    reads(0)
    for s in range(32):
        if s + 1 < 32:
            if (s + 1) % 4 == 0:
                p('s_waitcnt lgkmcnt(0)')
                p('s_barrier')
                reads(s + 1)
            else:
                reads(s + 1)
                p('s_waitcnt lgkmcnt(8)')
        else:
            p('s_waitcnt lgkmcnt(0)')
        mfmas(s)
    for rt in (1, 0):
        dst = PK1 if rt else PK
        a1, a2, a3 = ACC + (rt * 3) * 16, ACC + (rt * 3 + 1) * 16, ACC + (rt * 3 + 2) * 16
        for i in range(8):
            p(f'v_mul_f32 {V(a1 + i)}, {hex(f2u(QSCALE))}, {V(a1 + i)}')
        for i in range(8):
            p(f'v_cvt_pk_bf16_f32 {V(dst + i)}, {V(a1 + 2 * i)}, {V(a1 + 2 * i + 1)}')
        for i in range(8):
            p(f'v_cvt_pk_bf16_f32 {V(dst + 8 + i)}, {V(a2 + 2 * i)}, {V(a2 + 2 * i + 1)}')
        for i in range(8):
            p(f'v_cvt_pk_bf16_f32 {V(dst + 16 + i)}, {V(a3 + 2 * i)}, {V(a3 + 2 * i + 1)}')
        if rt:
            p(f's_mul_i32 {S(sT0)}, {S(sW)}, 6144')
            p(f's_add_u32 {S(sT0)}, {S(sT0)}, {HO}')
            p(f'v_add_u32 {V(vT)}, {S(sT0)}, {V(vL16)}')
            for j in range(6):
                p(f'ds_write_b128 {V(vT)}, {V(PK1 + 4 * j, 4)} offset:{j * 1024}')
    p('s_waitcnt lgkmcnt(0) vmcnt(0)')
    p('s_barrier')
    p('s_branch L_k1_common')

    p.label('L_k1_loader')
    p(f's_sub_u32 {S(sT3)}, {S(sW)}, 4')
    p(f's_cmp_lt_u32 {S(sT3)}, 2')
    p(f's_cselect_b32 {S(R_W)}, {S(P_BW)}, {S(P_AW)}')
    p(f's_cselect_b32 {S(R_W + 1)}, {S(P_BW + 1)}, {S(P_AW + 1)}')
    p(f's_and_b32 {S(R_W + 1)}, {S(R_W + 1)}, 0xffff')
    p(f's_mov_b32 {S(R_W + 2)}, {512 * 3072}')
    p(f's_mov_b32 {S(R_W + 3)}, 0x00020000')
    p(f'v_lshrrev_b32 {V(vT)}, 3, {V(vLANE)}')
    p(f'v_and_b32 {V(vT + 1)}, 7, {V(vLANE)}')
    p(f'v_lshrrev_b32 {V(vT + 2)}, 1, {V(vT)}')
    p(f'v_xor_b32 {V(vT + 3)}, {V(vT + 1)}, {V(vT + 2)}')
    p(f'v_lshlrev_b32 {V(vT + 3)}, 4, {V(vT + 3)}')
    p(f'v_lshl_add_u32 {V(vXoA)}, {V(vT)}, 10, {V(vT + 3)}')
    p(f'v_xor_b32 {V(vXoB)}, 64, {V(vXoA)}')
    p(f'v_lshrrev_b32 {V(vT)}, 1, {V(vLANE)}')
    p(f'v_mul_u32_u24 {V(vT)}, 3072, {V(vT)}')
    p(f'v_and_b32 {V(vT + 1)}, 1, {V(vLANE)}')
    p(f'v_lshl_add_u32 {V(vWo)}, {V(vT + 1)}, 4, {V(vT)}')
    sXB, sWB, sXL, sWL = 84, 85, 86, 87
    p(f's_lshl_b32 {S(sXB)}, {S(sQB)}, 18')
    p(f's_lshl_b32 {S(sT0)}, {S(sT3)}, 16')
    p(f's_add_u32 {S(sXB)}, {S(sXB)}, {S(sT0)}')
    p(f's_lshl_b32 {S(sXL)}, {S(sT3)}, 13')
    p(f's_and_b32 {S(sT0)}, {S(sT3)}, 1')
    p(f's_mul_i32 {S(sWB)}, {S(sT0)}, {32 * 3072}')
    p(f's_lshl_b32 {S(sT1)}, {S(sH)}, 5')
    p(f's_add_u32 {S(sWB)}, {S(sWB)}, {S(sT1)}')
    p(f's_lshl_b32 {S(sWL)}, {S(sT0)}, 10')
    p(f's_lshr_b32 {S(sT1)}, {S(sT3)}, 1')
    p(f's_mul_i32 {S(sT1)}, {S(sT1)}, {3 * SUBR}')
    p(f's_add_u32 {S(sWL)}, {S(sWL)}, {S(sT1)}')
    p(f's_add_u32 {S(sWL)}, {S(sWL)}, {WOFF}')

    def issue(c):
        sl = c % 3
        for jj in range(3):
            p(f's_add_u32 m0, {S(sWL)}, {sl * SLOT + jj * SUBR}')
            p(f's_add_u32 {S(sOFF)}, {S(sWB)}, {c * 64 * 3072 + jj * 1024}')
            p(f'buffer_load_dwordx4 {V(vWo)}, {S(R_W, 4)}, {S(sOFF)} offen lds')
        for j in range(8):
            p(f's_add_u32 m0, {S(sXL)}, {sl * SLOT + j * 1024}')
            p(f's_add_u32 {S(sOFF)}, {S(sXB)}, {c * 128 + j * 8192}')
            p(f'buffer_load_dwordx4 {V(vXoB if j & 1 else vXoA)}, {S(R_X, 4)}, {S(sOFF)} offen lds')

    issue(0)
    issue(1)
    issue(2)
    consts()
    NS = 12
    for c in range(8):
        if c == 0:
            n = 22 + 8
        elif c == 1:
            n = 11 + 8
        elif c <= 5:
            n = 11
        elif c == 6:
            n = 11 + NS
        else:
            n = NS
        p(f's_waitcnt vmcnt({n})')
        p('s_barrier')
        if 1 <= c <= 5:
            issue(c + 2)
        if c == 5:
            p(f'v_lshrrev_b32 {V(vT)}, 5, {V(vLANE)}')
            p(f'v_and_b32 {V(vT + 1)}, 31, {V(vLANE)}')
            p(f'v_lshlrev_b32 {V(vT + 1)}, 5, {V(vT + 1)}')
            p(f'v_lshl_add_u32 {V(vGo)}, {V(vT)}, 10, {V(vT + 1)}')
            p(f's_lshl_b32 {S(sT0)}, {S(sQB)}, 8')
            p(f's_lshl_b32 {S(sT1)}, {S(sH)}, 3')
            p(f's_add_u32 {S(sT0)}, {S(sT0)}, {S(sT1)}')
            p(f's_lshl_b32 {S(sT1)}, {S(sT3)}, 1')
            p(f's_add_u32 {S(sOFF2)}, {S(sT0)}, {S(sT1)}')
            p(f's_lshl_b32 {S(sT0)}, {S(sOFF2)}, 10')
            p(f'buffer_load_dwordx4 {V(GX, 4)}, {V(vGo)}, {S(R_X, 4)}, {S(sT0)} offen')
            p(f'buffer_load_dwordx4 {V(GX + 4, 4)}, {V(vGo)}, {S(R_X, 4)}, {S(sT0)} offen offset:16')
            p(f'buffer_load_dwordx4 {V(GW, 4)}, {V(vT + 1)}, {S(R_G, 4)}, 0 offen')
            p(f'buffer_load_dwordx4 {V(GW + 4, 4)}, {V(vT + 1)}, {S(R_G, 4)}, 0 offen offset:16')
            p(f's_cmp_lt_u32 {S(sWG)}, 128')
            p(f's_cselect_b32 {S(R_WO)}, {S(P_AWO)}, {S(P_BWO)}')
            p(f's_cselect_b32 {S(R_WO + 1)}, {S(P_AWO + 1)}, {S(P_BWO + 1)}')
            p(f's_and_b32 {S(R_WO + 1)}, {S(R_WO + 1)}, 0xffff')
            p(f's_mov_b32 {S(R_WO + 2)}, {512 * 1024}')
            p(f's_mov_b32 {S(R_WO + 3)}, 0x00020000')
            p(f's_lshl_b32 {S(sM0)}, {S(sWG)}, 2')
            p(f's_add_u32 {S(sM0)}, {S(sM0)}, {S(sT3)}')
            p(f's_bfe_u32 {S(sT0)}, {S(sM0)}, 0x50004')
            p(f's_lshl_b32 {S(sT0)}, {S(sT0)}, 14')
            p(f's_and_b32 {S(sT1)}, {S(sM0)}, 15')
            p(f's_lshl_b32 {S(sT1)}, {S(sT1)}, 6')
            p(f's_add_u32 {S(sT0)}, {S(sT0)}, {S(sT1)}')
            p(f's_add_u32 {S(sT1)}, {S(sT0)}, 8192')
            p(f'v_and_b32 {V(vT + 2)}, 31, {V(vLANE)}')
            p(f'v_lshlrev_b32 {V(vT + 2)}, 1, {V(vT + 2)}')
            p(f'v_lshl_add_u32 {V(vRo)}, {V(vT)}, 12, {V(vT + 2)}')
            for j in range(8):
                so = sT1 if j >= 4 else sT0
                p(f'buffer_load_ushort {V(WR + j)}, {V(vRo)}, {S(R_WO, 4)}, {S(so)} offen offset:{(j & 3) * 1024}')
    p('s_waitcnt vmcnt(0)')
    combine8(p, WR)
    p(f's_lshl_b32 {S(sT0)}, {S(sM0)}, 10')
    p(f's_add_u32 {S(sT0)}, {S(sT0)}, {WS_WO}')
    p(f'buffer_store_dwordx4 {V(WR, 4)}, {V(vL16)}, {S(R_WS, 4)}, {S(sT0)} offen')
    p(f'v_mov_b32 {V(vT)}, 0')
    for i in range(8):
        p(f'v_dot2_f32_bf16 {V(vT)}, {V(GX + i)}, {V(GW + i)}, {V(vT)}')
    p('s_nop 3')
    for sh in (1, 2, 4, 8):
        p(f'v_add_f32_dpp {V(vT)}, {V(vT)}, {V(vT)} row_ror:{sh} row_mask:0xf bank_mask:0xf')
    p(f'v_mov_b32 {V(vT + 1)}, {V(vT)}')
    p(f'v_permlane16_swap_b32 {V(vT)}, {V(vT + 1)}')
    p(f'v_add_f32 {V(vT)}, {V(vT)}, {V(vT + 1)}')
    p(f'v_cvt_pk_bf16_f32 {V(vT)}, {V(vT)}, {V(vT)}')
    p(f'v_and_b32 {V(vT)}, 0xffff0000, {V(vT)}')
    p(f'v_mul_f32 {V(vT)}, {hex(f2u(-LOG2E))}, {V(vT)}')
    p(f'v_exp_f32 {V(vT)}, {V(vT)}')
    p(f'v_add_f32 {V(vT)}, 1.0, {V(vT)}')
    p(f'v_rcp_f32 {V(vT)}, {V(vT)}')
    p(f'v_cvt_pk_bf16_f32 {V(vT)}, {V(vT)}, {V(vT)}')
    p(f'v_and_b32 {V(vT)}, 0xffff0000, {V(vT)}')
    p(f'v_and_b32 {V(vT + 1)}, 31, {V(vLANE)}')
    p(f'v_lshlrev_b32 {V(vT + 1)}, 26, {V(vT + 1)}')
    p(f'v_lshrrev_b32 {V(vT + 2)}, 5, {V(vLANE)}')
    p(f'v_lshl_add_u32 {V(vT + 1)}, {V(vT + 2)}, 2, {V(vT + 1)}')
    p(f's_lshl_b32 {S(sT0)}, {S(sOFF2)}, 2')
    p(f's_add_u32 {S(sT0)}, {S(sT0)}, {WS_G}')
    p(f'buffer_store_dword {V(vT)}, {V(vT + 1)}, {S(R_WS, 4)}, {S(sT0)} offen')
    p('s_barrier')
    p(f's_mul_i32 {S(sT0)}, {S(sT3)}, 6144')
    p(f's_add_u32 {S(sT0)}, {S(sT0)}, {HO}')
    p(f'v_add_u32 {V(vT)}, {S(sT0)}, {V(vL16)}')
    for j in range(6):
        p(f'ds_read_b128 {V(PK + 4 * j, 4)}, {V(vT)} offset:{j * 1024}')
    p('s_waitcnt lgkmcnt(0)')

    p.label('L_k1_common')
    combine8(p, vPHI)
    p(f's_lshl_b32 {S(sT0)}, {S(sH)}, 6')
    p(f's_add_u32 {S(sT0)}, {S(sT0)}, {S(sTI)}')
    p(f's_lshl_b32 {S(sT0)}, {S(sT0)}, 10')
    p(f's_add_u32 {S(sT1)}, {S(sT0)}, {WS_K}')
    p(f'buffer_store_dwordx4 {V(Kf, 4)}, {V(vL16)}, {S(R_WS, 4)}, {S(sT1)} offen')
    p(f'v_and_b32 {V(vO1)}, 15, {V(vLANE)}')
    p(f'v_lshlrev_b32 {V(vO1)}, 4, {V(vO1)}')
    p(f'v_lshrrev_b32 {V(vO2)}, 5, {V(vLANE)}')
    p(f'v_lshl_add_u32 {V(vO1)}, {V(vO2)}, 8, {V(vO1)}')
    p(f'v_bfe_u32 {V(vO2)}, {V(vLANE)}, 4, 1')
    p(f'v_lshl_add_u32 {V(vO1)}, {V(vO2)}, 30, {V(vO1)}')
    p(f's_add_u32 {S(sT1)}, {S(sT0)}, {WS_V}')
    p(f'buffer_store_dwordx4 {V(Vp, 4)}, {V(vO1)}, {S(R_WS, 4)}, {S(sT1)} offen')
    p(f'buffer_store_dwordx4 {V(Vp + 4, 4)}, {V(vO1)}, {S(R_WS, 4)}, {S(sT1)} offen offset:512')
    p(f's_add_u32 {S(sT1)}, {S(sT0)}, {WS_Q}')
    p(f'buffer_store_dwordx4 {V(Qf, 4)}, {V(vL16)}, {S(R_WS, 4)}, {S(sT1)} offen')
    p(f's_add_u32 {S(sT1)}, {S(sT0)}, {WS_QA}')
    p(f'buffer_store_dwordx4 {V(QAf, 4)}, {V(vL16)}, {S(R_WS, 4)}, {S(sT1)} offen')
    p(f'v_mfma_f32_32x32x16_bf16 {V(D1, 16)}, {V(vPHI, 4)}, {V(KAf, 4)}, 0')
    p(f'v_cmp_eq_u32 vcc, 0, {V(vO2)}')
    p(f'v_mov_b32 {V(vO2)}, 0x3f803f80')
    for i in range(8):
        p(f'v_cndmask_b32 {V(VA + i)}, {V(Vp + i)}, {V(vO2)}, vcc')
    softmax_pair(p, D1, Fp, Fm, TMP)
    p(f'v_mfma_f32_32x32x16_bf16 {V(D2, 16)}, {V(Fp, 4)}, {V(vIP, 4)}, 0')
    p(f'v_mfma_f32_32x32x16_bf16 {V(D2, 16)}, {V(Fm, 4)}, {V(vIM, 4)}, {V(D2, 16)}')
    for i in range(8):
        p(f'v_cvt_pk_bf16_f32 {V(G + i)}, {V(D2 + 2 * i)}, {V(D2 + 2 * i + 1)}')
    p(f'v_mfma_f32_32x32x16_bf16 {V(KV, 16)}, {V(G, 4)}, {V(VA, 4)}, 0')
    p(f'v_mfma_f32_32x32x16_bf16 {V(KV, 16)}, {V(G + 4, 4)}, {V(VA + 4, 4)}, {V(KV, 16)}')
    p(f'v_lshlrev_b32 {V(vO1)}, 3, {V(vLANE)}')
    p(f's_lshl_b32 {S(sT0)}, {S(sW)}, 12')
    p(f'v_add_u32 {V(vO2)}, {S(sT0)}, {V(vO1)}')
    for i in range(8):
        p(f'ds_write_b64 {V(vO2)}, {V(KV + 2 * i, 2)} offset:{i * 512}')
    p('s_waitcnt lgkmcnt(0)')
    p('s_barrier')
    p(f's_lshl_b32 {S(sT0)}, {S(sW)}, 9')
    p(f'v_add_u32 {V(vO2)}, {S(sT0)}, {V(vO1)}')
    for q in range(8):
        p(f'ds_read_b64 {V(D1 + 2 * q, 2)}, {V(vO2)} offset:{q * 4096}')
    p('s_waitcnt lgkmcnt(0)')
    for q in (0, 4):
        p(f'v_pk_add_f32 {V(D1 + 2 * q, 2)}, {V(D1 + 2 * q, 2)}, {V(D1 + 2 * q + 2, 2)}')
        p(f'v_pk_add_f32 {V(D1 + 2 * q + 4, 2)}, {V(D1 + 2 * q + 4, 2)}, {V(D1 + 2 * q + 6, 2)}')
        p(f'v_pk_add_f32 {V(D1 + 2 * q, 2)}, {V(D1 + 2 * q, 2)}, {V(D1 + 2 * q + 4, 2)}')
    p(f'v_pk_add_f32 {V(D1, 2)}, {V(D1, 2)}, {V(D1 + 8, 2)}')
    p(f's_lshl_b32 {S(sT0)}, {S(sH)}, 3')
    p(f's_add_u32 {S(sT0)}, {S(sT0)}, {S(sQB)}')
    p(f's_lshl_b32 {S(sT0)}, {S(sT0)}, 12')
    p(f's_add_u32 {S(sT0)}, {S(sT0)}, {WS_KVP}')
    p(f'buffer_store_dwordx2 {V(D1, 2)}, {V(vO2)}, {S(R_WS, 4)}, {S(sT0)} offen')
    p.label(END)
    p('s_endpgm')
    return p


def gen_k2():
    p = Prog()
    va = RegAlloc('v', 1, 256)
    vLANE = va.alloc()
    vL16 = va.alloc()
    vT = va.alloc(8, 2)
    vPHI = va.alloc(8, 4)
    Qf = va.alloc(4, 4)
    QAf = va.alloc(4, 4)
    Ko = va.alloc(4, 4)
    KP = va.alloc(16, 2)
    C = va.alloc(16, 4)
    SB = [va.alloc(16, 4), va.alloc(16, 4)]
    O = va.alloc(16, 4)
    P = va.alloc(8, 4)
    KF = [va.alloc(4, 4), va.alloc(4, 4)]
    VF = [va.alloc(8, 4), va.alloc(8, 4)]
    vKa, vVa0, vVa1 = va.alloc(), va.alloc(), va.alloc()
    vKn, vVn0, vVn1 = va.alloc(), va.alloc(), va.alloc()
    vVb0, vVb1 = va.alloc(), va.alloc()
    TMP = va.alloc(24, 4)
    Fp, Fm = va.alloc(4, 4), va.alloc(4, 4)
    KVF = va.alloc(8, 4)

    END = 'L_k2_end'
    common_prologue(p, 256, END)
    head_qb(p)
    p(f'v_and_b32 {V(vLANE)}, 63, v0')
    p(f'v_lshrrev_b32 {V(vT)}, 6, v0')
    p(f'v_lshlrev_b32 {V(vL16)}, 4, {V(vLANE)}')
    p(f'v_readfirstlane_b32 {S(sW)}, {V(vT)}')
    p(f's_mov_b32 {S(sL2E)}, {hex(f2u(LOG2E))}')
    p('s_waitcnt lgkmcnt(0)')
    srd(p, R_WS, P_WS, WS_SIZE)
    srd(p, R_PHI, P_PHI, 16384)
    p(f's_lshl_b32 {S(sT0)}, {S(sQB)}, 3')
    p(f's_add_u32 {S(sTI)}, {S(sT0)}, {S(sW)}')
    p(f's_lshl_b32 {S(sT0)}, {S(sH)}, 6')
    p(f's_add_u32 {S(sT0)}, {S(sT0)}, {S(sTI)}')
    p(f's_lshl_b32 {S(sT0)}, {S(sT0)}, 10')
    p(f'buffer_load_dwordx4 {V(Qf, 4)}, {V(vL16)}, {S(R_WS, 4)}, {S(sT0)} offen')
    p(f's_add_u32 {S(sT1)}, {S(sT0)}, {WS_K}')
    p(f'buffer_load_dwordx4 {V(Ko, 4)}, {V(vL16)}, {S(R_WS, 4)}, {S(sT1)} offen')
    p(f's_lshl_b32 {S(sT2)}, {S(sH)}, 16')
    p(f's_lshl_b32 {S(sT3)}, {S(sW)}, 10')
    p(f's_add_u32 {S(sT2)}, {S(sT2)}, {S(sT3)}')
    p(f's_mul_i32 {S(sOFF2)}, {S(sW)}, {VSTR}')
    for c in range(8):
        p(f's_add_u32 m0, {S(sT3)}, {L_K + c * 8192}')
        p(f's_add_u32 {S(sOFF)}, {S(sT2)}, {WS_K + c * 8192}')
        p(f'buffer_load_dwordx4 {V(vL16)}, {S(R_WS, 4)}, {S(sOFF)} offen lds')
        p(f's_add_u32 m0, {S(sOFF2)}, {L_V + c * 8 * VSTR}')
        p(f's_add_u32 {S(sOFF)}, {S(sT2)}, {WS_V + c * 8192}')
        p(f'buffer_load_dwordx4 {V(vL16)}, {S(R_WS, 4)}, {S(sOFF)} offen lds')
    p(f's_add_u32 {S(sT1)}, {S(sT0)}, {WS_QA}')
    p(f'buffer_load_dwordx4 {V(QAf, 4)}, {V(vL16)}, {S(R_WS, 4)}, {S(sT1)} offen')
    load_wphi(p, vPHI, vT, vLANE)
    p(f'v_lshlrev_b32 {V(vT + 2)}, 3, {V(vLANE)}')
    p(f's_lshl_b32 {S(sT0)}, {S(sH)}, 15')
    p(f's_lshl_b32 {S(sT1)}, {S(sW)}, 9')
    p(f's_add_u32 {S(sT0)}, {S(sT0)}, {S(sT1)}')
    for q in range(8):
        p(f's_add_u32 {S(sT1)}, {S(sT0)}, {WS_KVP + q * 4096}')
        p(f'buffer_load_dwordx2 {V(KP + 2 * q, 2)}, {V(vT + 2)}, {S(R_WS, 4)}, {S(sT1)} offen')
    NLATE = 1 + 8 + 8
    p(f'v_mov_b32 {V(TMP)}, 0x3f803f80')
    p(f'v_mov_b32 {V(TMP + 1)}, 0x3f803f80')
    p(f'v_mov_b32 {V(TMP + 2)}, 0x3f803f80')
    p(f'v_mov_b32 {V(TMP + 3)}, 0x3f803f80')
    p(f'v_mul_u32_u24 {V(vT + 3)}, {VSTR}, {V(vLANE)}')
    p(f'v_add_u32 {V(vT + 3)}, {L_V + 1024}, {V(vT + 3)}')
    p(f'ds_write_b128 {V(vT + 3)}, {V(TMP, 4)}')
    p(f'v_and_b32 {V(vT)}, 15, {V(vLANE)}')
    p(f'v_lshlrev_b32 {V(vT)}, 4, {V(vT)}')
    p(f'v_lshrrev_b32 {V(vT + 1)}, 5, {V(vLANE)}')
    p(f'v_lshl_add_u32 {V(vT)}, {V(vT + 1)}, 8, {V(vT)}')
    p(f'v_add_u32 {V(vT + 1)}, 512, {V(vT)}')
    p(f'v_bfe_u32 {V(vT + 2)}, {V(vLANE)}, 4, 1')
    p(f'v_cmp_eq_u32 vcc, 0, {V(vT + 2)}')
    p(f'v_mov_b32 {V(vT + 3)}, 1024')
    p(f'v_cndmask_b32 {V(vVb0)}, {V(vT + 3)}, {V(vT)}, vcc')
    p(f'v_cndmask_b32 {V(vVb1)}, {V(vT + 3)}, {V(vT + 1)}, vcc')
    p(f's_waitcnt vmcnt({16 + NLATE})')
    p(f'v_mfma_f32_32x32x16_bf16 {V(SB[0], 16)}, {V(Ko, 4)}, {V(Qf, 4)}, 0')

    def rowmax_to(dst, sb, init):
        x = sb
        if init:
            p(f'v_max3_f32 {V(dst)}, {V(x)}, {V(x + 1)}, {V(x + 2)}')
            rest = list(range(3, 16))
        else:
            rest = list(range(16))
        while len(rest) >= 2:
            a, b = rest.pop(0), rest.pop(0)
            p(f'v_max3_f32 {V(dst)}, {V(dst)}, {V(x + a)}, {V(x + b)}')
        if rest:
            p(f'v_max_f32 {V(dst)}, {V(dst)}, {V(x + rest[0])}')

    def set_C(m):
        p(f'v_mov_b32 {V(vT + 1)}, {V(m)}')
        p(f'v_permlane32_swap_b32 {V(m)}, {V(vT + 1)}')
        p(f'v_max_f32 {V(m)}, {V(m)}, {V(vT + 1)}')
        p(f'v_sub_f32 {V(C)}, 0, {V(m)}')
        for i in range(1, 16):
            p(f'v_mov_b32 {V(C + i)}, {V(C)}')

    rowmax_to(vT, SB[0], True)
    set_C(vT)
    p(f's_waitcnt vmcnt({NLATE}) lgkmcnt(0)')
    p('s_barrier')
    p(f's_mov_b32 {S(sST)}, 0')

    p.label('L_k2_pass')
    p(f's_mov_b32 {S(sCH)}, {S(sQB)}')
    p(f's_mov_b32 {S(sCNT)}, 8')

    def chunk_addr(k, v0, v1, sch):
        p(f's_lshl_b32 {S(sT0)}, {S(sch)}, 13')
        p(f's_mul_i32 {S(sT1)}, {S(sch)}, {8 * VSTR}')
        p(f's_add_u32 {S(sT1)}, {S(sT1)}, {L_V}')
        p(f'v_add_u32 {V(k)}, {S(sT0)}, {V(vL16)}')
        p(f'v_add_u32 {V(v0)}, {S(sT1)}, {V(vVb0)}')
        p(f'v_add_u32 {V(v1)}, {S(sT1)}, {V(vVb1)}')

    chunk_addr(vKa, vVa0, vVa1, sCH)
    p(f'ds_read_b128 {V(KF[0], 4)}, {V(vKa)}')
    p(f'ds_read_b128 {V(KF[1], 4)}, {V(vKa)} offset:1024')
    p(f'ds_read_b128 {V(VF[0], 4)}, {V(vVa0)}')
    p(f'ds_read_b128 {V(VF[0] + 4, 4)}, {V(vVa1)}')
    for i in range(16):
        p(f'v_mov_b32 {V(O + i)}, 0')
    p('s_waitcnt lgkmcnt(3)')
    p(f'v_mfma_f32_32x32x16_bf16 {V(SB[0], 16)}, {V(KF[0], 4)}, {V(Qf, 4)}, {V(C, 16)}')
    p.label('L_k2_loop')
    p(f's_add_u32 {S(sT2)}, {S(sCH)}, 1')
    p(f's_and_b32 {S(sCH)}, {S(sT2)}, 7')
    chunk_addr(vKn, vVn0, vVn1, sCH)
    for i in range(8):
        b = i & 1
        sb = SB[b]
        p('s_waitcnt lgkmcnt(0)')
        p(f'v_mfma_f32_32x32x16_bf16 {V(SB[b ^ 1], 16)}, {V(KF[b ^ 1], 4)}, {V(Qf, 4)}, {V(C, 16)}')
        if i + 2 < 8:
            p(f'ds_read_b128 {V(KF[b], 4)}, {V(vKa)} offset:{(i + 2) * 1024}')
        else:
            p(f'ds_read_b128 {V(KF[b], 4)}, {V(vKn)} offset:{(i + 2 - 8) * 1024}')
        e = lambda j: p(f'v_exp_f32 {V(sb + j)}, {V(sb + j)}')
        c = lambda j: p(f'v_cvt_pk_bf16_f32 {V(P + j)}, {V(sb + 2 * j)}, {V(sb + 2 * j + 1)}')
        e(0); e(1)
        if i + 1 < 8:
            p(f'ds_read_b128 {V(VF[b ^ 1], 4)}, {V(vVa0)} offset:{(i + 1) * VSTR}')
            p(f'ds_read_b128 {V(VF[b ^ 1] + 4, 4)}, {V(vVa1)} offset:{(i + 1) * VSTR}')
        else:
            p(f'ds_read_b128 {V(VF[b ^ 1], 4)}, {V(vVn0)}')
            p(f'ds_read_b128 {V(VF[b ^ 1] + 4, 4)}, {V(vVn1)}')
        e(2); e(3); c(0)
        e(4); e(5); c(1)
        e(6); e(7); c(2)
        e(8); e(9); c(3)
        e(10); e(11)
        p(f'v_mfma_f32_32x32x16_bf16 {V(O, 16)}, {V(VF[b], 4)}, {V(P, 4)}, {V(O, 16)}')
        c(4)
        e(12); e(13); c(5)
        e(14); e(15); c(6)
        p('s_nop 0')
        c(7)
        p('s_nop 1')
        p(f'v_mfma_f32_32x32x16_bf16 {V(O, 16)}, {V(VF[b] + 4, 4)}, {V(P + 4, 4)}, {V(O, 16)}')
    p(f'v_mov_b32 {V(vKa)}, {V(vKn)}')
    p(f'v_mov_b32 {V(vVa0)}, {V(vVn0)}')
    p(f'v_mov_b32 {V(vVa1)}, {V(vVn1)}')
    p(f's_sub_u32 {S(sCNT)}, {S(sCNT)}, 1')
    p(f's_cmp_lg_u32 {S(sCNT)}, 0')
    p('s_cbranch_scc1 L_k2_loop')
    p('s_waitcnt lgkmcnt(0)')
    p(f's_cmp_lg_u32 {S(sST)}, 0')
    p('s_cbranch_scc1 L_k2_fin')
    p(f'v_mov_b32 {V(vT)}, {hex(f2u(2.0 ** 64))}')
    p(f's_mov_b32 {S(sT0)}, 0x207')
    p(f'v_cmp_nle_f32 vcc, {V(O + 8)}, {V(vT)}')
    p(f's_mov_b64 {S(sMSK, 2)}, vcc')
    for i in range(8):
        p(f'v_cmp_class_f32 vcc, {V(O + i)}, {S(sT0)}')
        p(f's_or_b64 {S(sMSK, 2)}, {S(sMSK, 2)}, vcc')
    p(f's_cmp_eq_u64 {S(sMSK, 2)}, 0')
    p('s_cbranch_scc1 L_k2_fin')
    p(f's_mov_b32 {S(sST)}, 1')
    p(f's_mov_b32 {S(sCNT)}, 0')
    p(f'v_mov_b32 {V(vT)}, 0xff800000')
    p.label('L_k2_max')
    p(f's_lshl_b32 {S(sT0)}, {S(sCNT)}, 10')
    p(f'v_add_u32 {V(vKa)}, {S(sT0)}, {V(vL16)}')
    p(f'ds_read_b128 {V(KF[0], 4)}, {V(vKa)}')
    p('s_waitcnt lgkmcnt(0)')
    p(f'v_mfma_f32_32x32x16_bf16 {V(SB[0], 16)}, {V(KF[0], 4)}, {V(Qf, 4)}, 0')
    rowmax_to(vT, SB[0], False)
    p(f's_add_u32 {S(sCNT)}, {S(sCNT)}, 1')
    p(f's_cmp_lt_u32 {S(sCNT)}, 64')
    p('s_cbranch_scc1 L_k2_max')
    set_C(vT)
    p('s_branch L_k2_pass')

    p.label('L_k2_fin')
    p(f'v_rcp_f32 {V(vT)}, {V(O + 8)}')
    for i in range(8):
        p(f'v_mul_f32 {V(O + i)}, {V(O + i)}, {V(vT)}')
    for i in range(4):
        p(f'v_cvt_pk_bf16_f32 {V(P + i)}, {V(O + 2 * i)}, {V(O + 2 * i + 1)}')
    p(f's_lshl_b32 {S(sT0)}, {S(sTI)}, 5')
    p(f's_add_u32 {S(sT0)}, {S(sT0)}, {S(sH)}')
    p(f's_lshl_b32 {S(sOFF)}, {S(sT0)}, 10')
    p(f's_add_u32 {S(sT1)}, {S(sOFF)}, {WS_O + 0x200000}')
    p(f'buffer_store_dwordx4 {V(P, 4)}, {V(vL16)}, {S(R_WS, 4)}, {S(sT1)} offen')
    p('s_waitcnt vmcnt(1)')
    combine8(p, vPHI)
    p(f'v_mfma_f32_32x32x16_bf16 {V(SB[0], 16)}, {V(vPHI, 4)}, {V(QAf, 4)}, 0')
    for q in (0, 4):
        p(f'v_pk_add_f32 {V(KP + 2 * q, 2)}, {V(KP + 2 * q, 2)}, {V(KP + 2 * q + 2, 2)}')
        p(f'v_pk_add_f32 {V(KP + 2 * q + 4, 2)}, {V(KP + 2 * q + 4, 2)}, {V(KP + 2 * q + 6, 2)}')
        p(f'v_pk_add_f32 {V(KP + 2 * q, 2)}, {V(KP + 2 * q, 2)}, {V(KP + 2 * q + 4, 2)}')
    p(f'v_pk_add_f32 {V(KP, 2)}, {V(KP, 2)}, {V(KP + 8, 2)}')
    p(f'v_cvt_pk_bf16_f32 {V(KP)}, {V(KP)}, {V(KP + 1)}')
    p(f'v_lshlrev_b32 {V(vT + 2)}, 5, {V(vLANE)}')
    p(f'v_add_u32 {V(vT + 2)}, {L_KVS}, {V(vT + 2)}')
    p(f's_lshl_b32 {S(sT0)}, {S(sW)}, 2')
    p(f'v_add_u32 {V(vT + 3)}, {S(sT0)}, {V(vT + 2)}')
    p(f'ds_write_b32 {V(vT + 3)}, {V(KP)}')
    softmax_pair(p, SB[0], Fp, Fm, TMP)
    p('s_waitcnt lgkmcnt(0)')
    p('s_barrier')
    p(f'ds_read_b128 {V(KVF, 4)}, {V(vT + 2)}')
    p(f'ds_read_b128 {V(KVF + 4, 4)}, {V(vT + 2)} offset:16')
    p('s_waitcnt lgkmcnt(0)')
    p(f'v_mfma_f32_32x32x16_bf16 {V(SB[1], 16)}, {V(KVF, 4)}, {V(Fp, 4)}, 0')
    p(f'v_mfma_f32_32x32x16_bf16 {V(SB[1], 16)}, {V(KVF + 4, 4)}, {V(Fm, 4)}, {V(SB[1], 16)}')
    p(f'v_add_f32 {V(vT)}, {hex(f2u(1e-6))}, {V(SB[1])}')
    p(f'v_rcp_f32 {V(vT)}, {V(vT)}')
    for i in range(8):
        p(f'v_mul_f32 {V(SB[1] + 8 + i)}, {V(SB[1] + 8 + i)}, {V(vT)}')
    for i in range(4):
        p(f'v_cvt_pk_bf16_f32 {V(P + 4 + i)}, {V(SB[1] + 8 + 2 * i)}, {V(SB[1] + 9 + 2 * i)}')
    p(f's_add_u32 {S(sT1)}, {S(sOFF)}, {WS_O}')
    p(f'buffer_store_dwordx4 {V(P + 4, 4)}, {V(vL16)}, {S(R_WS, 4)}, {S(sT1)} offen')
    p.label(END)
    p('s_endpgm')
    return p


K3_RS = 272
K3_PART = 64 * K3_RS
LDS3 = 4 * K3_PART


def gen_k3():
    p = Prog()
    va = RegAlloc('v', 1, 256)
    vLANE = va.alloc()
    vL16 = va.alloc()
    vT = va.alloc(8, 2)
    vG = va.alloc(2)
    NB = 12
    FRB = va.alloc(16 * NB, 4)
    RD = FRB
    END = 'L_k3_end'
    common_prologue(p, 256, END)
    p(f's_and_b32 {S(sT0)}, {S(sWG)}, 7')
    p(f's_lshr_b32 {S(sT1)}, {S(sWG)}, 3')
    p(f's_lshl_b32 {S(sH)}, {S(sT0)}, 2')
    p(f's_and_b32 {S(sT2)}, {S(sT1)}, 3')
    p(f's_add_u32 {S(sH)}, {S(sH)}, {S(sT2)}')
    p(f's_lshr_b32 {S(sQB)}, {S(sT1)}, 2')
    p(f'v_and_b32 {V(vLANE)}, 63, v0')
    p(f'v_lshrrev_b32 {V(vT)}, 6, v0')
    p(f'v_lshlrev_b32 {V(vL16)}, 4, {V(vLANE)}')
    p(f'v_readfirstlane_b32 {S(sW)}, {V(vT)}')
    p('s_waitcnt lgkmcnt(0)')
    srd(p, R_WS, P_WS, WS_SIZE)
    srd(p, R_OUT, P_OUT, 2048 * 1024)
    p(f's_lshr_b32 {S(sT0)}, {S(sW)}, 1')
    p(f's_and_b32 {S(sT1)}, {S(sW)}, 1')
    sOB, sWB = 84, 85
    p(f's_lshl_b32 {S(sOB)}, {S(sT0)}, 21')
    p(f's_lshl_b32 {S(sT2)}, {S(sH)}, 16')
    p(f's_add_u32 {S(sOB)}, {S(sOB)}, {S(sT2)}')
    p(f's_lshl_b32 {S(sT2)}, {S(sT1)}, 14')
    p(f's_add_u32 {S(sOB)}, {S(sOB)}, {S(sT2)}')
    p(f's_add_u32 {S(sOB)}, {S(sOB)}, {WS_O}')
    p(f's_lshl_b32 {S(sWB)}, {S(sT0)}, 19')
    p(f's_lshl_b32 {S(sT2)}, {S(sT1)}, 18')
    p(f's_add_u32 {S(sWB)}, {S(sWB)}, {S(sT2)}')
    p(f's_lshl_b32 {S(sT2)}, {S(sQB)}, 11')
    p(f's_add_u32 {S(sWB)}, {S(sWB)}, {S(sT2)}')
    p(f's_add_u32 {S(sWB)}, {S(sWB)}, {WS_WO}')

    def loads(k):
        F = FRB + 16 * (k % NB)
        p(f's_add_u32 {S(sOFF)}, {S(sOB)}, {k * 1024}')
        p(f's_add_u32 {S(sOFF2)}, {S(sWB)}, {k * 16384}')
        p(f'buffer_load_dwordx4 {V(F, 4)}, {V(vL16)}, {S(R_WS, 4)}, {S(sOFF)} offen')
        p(f'buffer_load_dwordx4 {V(F + 8, 4)}, {V(vL16)}, {S(R_WS, 4)}, {S(sOFF2)} offen')
        p(f's_add_u32 {S(sOFF)}, {S(sOB)}, {k * 1024 + 32768}')
        p(f'buffer_load_dwordx4 {V(F + 12, 4)}, {V(vL16)}, {S(R_WS, 4)}, {S(sOFF2)} offen offset:1024')
        p(f'buffer_load_dwordx4 {V(F + 4, 4)}, {V(vL16)}, {S(R_WS, 4)}, {S(sOFF)} offen')

    p(f'v_and_b32 {V(vT)}, 31, {V(vLANE)}')
    p(f'v_lshlrev_b32 {V(vT)}, 2, {V(vT)}')
    p(f's_lshl_b32 {S(sT2)}, {S(sH)}, 8')
    p(f's_add_u32 {S(sT2)}, {S(sT2)}, {WS_G}')
    p(f'buffer_load_dword {V(vG)}, {V(vT)}, {S(R_WS, 4)}, {S(sT2)} offen')
    p(f'buffer_load_dword {V(vG + 1)}, {V(vT)}, {S(R_WS, 4)}, {S(sT2)} offen offset:128')
    for k in range(NB):
        loads(k)
    for k in range(16):
        issued = min(16, NB + k)
        p(f's_waitcnt vmcnt({4 * (issued - k - 1)})')
        F = FRB + 16 * (k % NB)
        for rt in range(2):
            for ct in range(2):
                acc = (rt * 2 + ct) * 16
                c = '0' if k == 0 else A(acc, 16)
                p(f'v_mfma_f32_32x32x16_bf16 {A(acc, 16)}, {V(F + 8 + 4 * ct, 4)}, {V(F + 4 * rt, 4)}, {c}')
        if k + NB < 16:
            loads(k + NB)
    p(f'v_sub_f32 {V(vT)}, 1.0, {V(vG)}')
    p(f'v_sub_f32 {V(vT + 1)}, 1.0, {V(vG + 1)}')
    p(f'v_cvt_pk_bf16_f32 {V(vT + 2)}, {V(vT)}, {V(vT + 1)}')
    p(f'v_lshlrev_b32 {V(vT)}, 16, {V(vT + 2)}')
    p(f'v_and_b32 {V(vT + 1)}, 0xffff0000, {V(vT + 2)}')
    p(f's_cmp_eq_u32 {S(sT0)}, 0')
    p(f's_cselect_b64 {S(sMSK, 2)}, -1, 0')
    p(f'v_cndmask_b32 {V(vG)}, {V(vT)}, {V(vG)}, {S(sMSK, 2)}')
    p(f'v_cndmask_b32 {V(vG + 1)}, {V(vT + 1)}, {V(vG + 1)}, {S(sMSK, 2)}')
    p(f'v_and_b32 {V(vT)}, 31, {V(vLANE)}')
    p(f'v_mul_u32_u24 {V(vT)}, {K3_RS}, {V(vT)}')
    p(f'v_lshrrev_b32 {V(vT + 1)}, 5, {V(vLANE)}')
    p(f'v_lshl_add_u32 {V(vT)}, {V(vT + 1)}, 4, {V(vT)}')
    p(f's_mul_i32 {S(sT2)}, {S(sW)}, {K3_PART}')
    p(f'v_add_u32 {V(vT)}, {S(sT2)}, {V(vT)}')
    for rt in range(2):
        for ct in range(2):
            acc = (rt * 2 + ct) * 16
            for r in range(16):
                p(f'v_accvgpr_read_b32 {V(RD + acc + r)}, {A(acc + r)}')
            for r in range(16):
                p(f'v_mul_f32 {V(RD + acc + r)}, {V(RD + acc + r)}, {V(vG + rt)}')
            for q in range(4):
                p(f'ds_write_b128 {V(vT)}, {V(RD + acc + 4 * q, 4)} offset:{rt * 32 * K3_RS + ct * 128 + q * 32}')
    p('s_waitcnt lgkmcnt(0)')
    p('s_barrier')
    p(f'v_lshrrev_b32 {V(vT)}, 2, v0')
    p(f'v_and_b32 {V(vT + 1)}, 3, v0')
    p(f'v_mul_u32_u24 {V(vT + 2)}, {K3_RS}, {V(vT)}')
    p(f'v_lshl_add_u32 {V(vT + 2)}, {V(vT + 1)}, 6, {V(vT + 2)}')
    for w in range(4):
        for q in range(4):
            p(f'ds_read_b128 {V(RD + w * 16 + q * 4, 4)}, {V(vT + 2)} offset:{w * K3_PART + q * 16}')
    p(f'v_lshlrev_b32 {V(vT + 3)}, 10, {V(vT)}')
    p(f'v_lshl_add_u32 {V(vT + 3)}, {V(vT + 1)}, 5, {V(vT + 3)}')
    p(f's_lshl_b32 {S(sT2)}, {S(sH)}, 16')
    p(f's_lshl_b32 {S(sT3)}, {S(sQB)}, 7')
    p(f's_add_u32 {S(sT2)}, {S(sT2)}, {S(sT3)}')
    p('s_waitcnt lgkmcnt(8)')
    for i in range(8):
        p(f'v_pk_add_f32 {V(RD + 2 * i, 2)}, {V(RD + 2 * i, 2)}, {V(RD + 16 + 2 * i, 2)}')
    p('s_waitcnt lgkmcnt(0)')
    for i in range(8):
        p(f'v_pk_add_f32 {V(RD + 32 + 2 * i, 2)}, {V(RD + 32 + 2 * i, 2)}, {V(RD + 48 + 2 * i, 2)}')
    for i in range(8):
        p(f'v_pk_add_f32 {V(RD + 2 * i, 2)}, {V(RD + 2 * i, 2)}, {V(RD + 32 + 2 * i, 2)}')
    for i in range(8):
        p(f'v_cvt_pk_bf16_f32 {V(RD + 64 + i)}, {V(RD + 2 * i)}, {V(RD + 2 * i + 1)}')
    p(f'buffer_store_dwordx4 {V(RD + 64, 4)}, {V(vT + 3)}, {S(R_OUT, 4)}, {S(sT2)} offen')
    p(f'buffer_store_dwordx4 {V(RD + 68, 4)}, {V(vT + 3)}, {S(R_OUT, 4)}, {S(sT2)} offen offset:16')
    p.label(END)
    p('s_endpgm')
    return p


HEADER = '''; Kernarg layout for this problem (88 bytes, ptrs only, base s[0:1]):
'''


def build(kernels, path):
    s = HEADER
    for (name, prog, grid, block, lds) in kernels:
        s += f'; @launch kernel={name} grid=({grid},1,1) block=({block},1,1) lds={lds}\n'
    s += '.amdgcn_target "amdgcn-amd-amdhsa--gfx950"\n.text\n'
    for (name, prog, grid, block, lds) in kernels:
        prog.hazard_pass(verbose=bool(os.environ.get('HZV')))
        mv, ma, ms = prog.max_regs()
        print(f'{name}: {len(prog.ins)} lines, vgpr {mv + 1}, agpr {ma + 1}, sgpr {ms + 1}, auto nops {prog.nops_added}')
        s += f'.globl {name}\n.p2align 8\n.type {name},@function\n{name}:\n'
        s += prog.text()
        s += kernel_desc(name, mv + 1, ma + 1, min(102, ms + 1))
    open(path, 'w').write(s)


if __name__ == '__main__':
    out = sys.argv[1] if len(sys.argv) > 1 else f'cdna_kernels/{NAME}.s'
    build([
        ('k1_qkv_kernel', gen_k1(), 256, 512, LDS1),
        ('k2_attn_kernel', gen_k2(), 256, 512, LDS2),
        ('k3_out_kernel', gen_k3(), 256, 256, LDS3),
    ], out)
```

```python
import math
import sys
import os
sys.path.insert(0, os.path.dirname(__file__))
from asmlib import Prog, RegAlloc, V, A, S, f2u, kernel_desc

NAME = 'gated_mix__linear_kernel_hedgehog__softmax_full_mha__prompt'

WS_Q = 0x000000
WS_K = 0x200000
WS_V = 0x400000
WS_QA = 0x600000
WS_KVP = 0x800000
WS_O = 0x900000
WS_WO = 0xD00000
WS_G = 0xE00000
WS_FLG = 0xE02000
WS_SIZE = 0xE04000

LOG2E = math.log2(math.e)
QSCALE = 0.25 * LOG2E

SLOT = 45824
WOFF = 32768
SUBR = 2176
HO = 3 * SLOT
LDS1 = HO + 4 * 6144
L_K = 0
L_V = 65536
VSTR = 1040
L_KVS = L_V + 64 * VSTR
LDS2 = L_KVS + 2048

sKA = 0
sWG = 2
P_X, P_AW, P_PHI, P_AWO = 4, 6, 8, 10
P_BX, P_BW, P_BWO, P_GW = 12, 14, 16, 18
P_OUT, P_DBG, P_WS = 20, 22, 24
R_X, R_W, R_WS, R_PHI, R_WO, R_G, R_OUT, R_DBG = 28, 32, 36, 40, 44, 48, 52, 56
sH, sQB, sW, sT0, sT1, sT2, sT3, sL2E, sRT, sTI = 60, 61, 62, 63, 64, 65, 66, 67, 68, 69
sM0, sOFF, sOFF2, sMSK = 70, 71, 72, 74
sCNT, sST, sCH = 76, 77, 78
sEX = 80


STAMP = bool(os.environ.get('STAMP'))
WS_ST = 0xF00000
if STAMP:
    WS_SIZE = 0x1000000
ST0 = 88
NST = 12


def stamp(p, k, real=False):
    if STAMP:
        p('s_memrealtime s[100:101]' if real else 's_memtime s[100:101]')
        p('s_waitcnt lgkmcnt(0)')
        p(f's_mov_b32 {S(ST0 + k)}, s100')


def stamp_init(p):
    if STAMP:
        stamp(p, 10, True)
        stamp(p, 0)
        for k in range(1, 10):
            p(f's_mov_b32 {S(ST0 + k)}, {S(ST0)}')


def stamp_flush(p, kidx, vt, nw):
    if not STAMP:
        return
    p('s_waitcnt vmcnt(0)')
    stamp(p, 9)
    stamp(p, 11, True)
    p(f's_mul_i32 {S(sT0)}, {S(sWG)}, {nw}')
    p(f's_add_u32 {S(sT0)}, {S(sT0)}, {S(sW)}')
    p(f's_lshl_b32 {S(sT0)}, {S(sT0)}, 6')
    p(f's_add_u32 {S(sT0)}, {S(sT0)}, {WS_ST + kidx * 0x40000}')
    p(f'v_mov_b32 {V(vt)}, 0')
    for k in range(NST):
        p(f'v_mov_b32 {V(vt + 1)}, {S(ST0 + k)}')
        p(f'buffer_store_dword {V(vt + 1)}, {V(vt)}, {S(R_WS, 4)}, {S(sT0)} offen offset:{4 * k}')


def srd(p, r, ptr, size):
    p(f's_mov_b32 {S(r)}, {S(ptr)}')
    p(f's_and_b32 {S(r + 1)}, {S(ptr + 1)}, 0xffff')
    p(f's_mov_b32 {S(r + 2)}, {size}')
    p(f's_mov_b32 {S(r + 3)}, 0x00020000')


def common_prologue(p, nwg, endlabel):
    p(f's_cmp_ge_u32 {S(sWG)}, {nwg}')
    p(f's_cbranch_scc1 {endlabel}')
    p(f's_load_dwordx8 {S(4, 8)}, {S(0, 2)}, 0')
    p(f's_load_dwordx8 {S(12, 8)}, {S(0, 2)}, 32')
    p(f's_load_dwordx4 {S(20, 4)}, {S(0, 2)}, 64')
    p(f's_load_dwordx2 {S(24, 2)}, {S(0, 2)}, 80')


def head_qb(p):
    p(f's_and_b32 {S(sT0)}, {S(sWG)}, 7')
    p(f's_lshr_b32 {S(sT1)}, {S(sWG)}, 3')
    p(f's_lshl_b32 {S(sH)}, {S(sT0)}, 2')
    p(f's_and_b32 {S(sT2)}, {S(sT1)}, 3')
    p(f's_add_u32 {S(sH)}, {S(sH)}, {S(sT2)}')
    p(f's_lshr_b32 {S(sQB)}, {S(sT1)}, 2')


def softmax_pair(p, x, Fp, Fm, t):
    c = t
    mx, mn, u0, u1 = t + 4, t + 5, t + 6, t + 7
    em = t + 8
    for i in range(4):
        p(f'v_cvt_pk_bf16_f32 {V(c + i)}, {V(x + 2 * i)}, {V(x + 2 * i + 1)}')
    for i in range(4):
        p(f'v_lshlrev_b32 {V(x + 2 * i)}, 16, {V(c + i)}')
        p(f'v_and_b32 {V(x + 2 * i + 1)}, 0xffff0000, {V(c + i)}')
    p(f'v_max3_f32 {V(mx)}, {V(x)}, {V(x + 1)}, {V(x + 2)}')
    p(f'v_min3_f32 {V(mn)}, {V(x)}, {V(x + 1)}, {V(x + 2)}')
    p(f'v_max3_f32 {V(mx)}, {V(mx)}, {V(x + 3)}, {V(x + 4)}')
    p(f'v_min3_f32 {V(mn)}, {V(mn)}, {V(x + 3)}, {V(x + 4)}')
    p(f'v_max3_f32 {V(mx)}, {V(mx)}, {V(x + 5)}, {V(x + 6)}')
    p(f'v_min3_f32 {V(mn)}, {V(mn)}, {V(x + 5)}, {V(x + 6)}')
    p(f'v_max_f32 {V(mx)}, {V(mx)}, {V(x + 7)}')
    p(f'v_min_f32 {V(mn)}, {V(mn)}, {V(x + 7)}')
    p(f'v_mov_b32 {V(u0)}, {V(mx)}')
    p(f'v_mov_b32 {V(u1)}, {V(mn)}')
    p(f'v_permlane32_swap_b32 {V(mx)}, {V(u0)}')
    p(f'v_permlane32_swap_b32 {V(mn)}, {V(u1)}')
    p(f'v_max_f32 {V(mx)}, {V(mx)}, {V(u0)}')
    p(f'v_min_f32 {V(mn)}, {V(mn)}, {V(u1)}')
    p(f'v_mul_f32 {V(mx)}, {hex(f2u(-LOG2E))}, {V(mx)}')
    p(f'v_mul_f32 {V(mn)}, {hex(f2u(LOG2E))}, {V(mn)}')
    for i in range(8):
        p(f'v_fma_f32 {V(em + i)}, -{V(x + i)}, {S(sL2E)}, {V(mn)}')
        p(f'v_fma_f32 {V(x + i)}, {V(x + i)}, {S(sL2E)}, {V(mx)}')
    for i in range(8):
        p(f'v_exp_f32 {V(x + i)}, {V(x + i)}')
        p(f'v_exp_f32 {V(em + i)}, {V(em + i)}')
    sp, sm = mx, mn
    p(f'v_add_f32 {V(sp)}, {V(x)}, {V(x + 1)}')
    p(f'v_add_f32 {V(sm)}, {V(em)}, {V(em + 1)}')
    p(f'v_add_f32 {V(u0)}, {V(x + 2)}, {V(x + 3)}')
    p(f'v_add_f32 {V(u1)}, {V(em + 2)}, {V(em + 3)}')
    p(f'v_add_f32 {V(sp)}, {V(sp)}, {V(u0)}')
    p(f'v_add_f32 {V(sm)}, {V(sm)}, {V(u1)}')
    p(f'v_add_f32 {V(u0)}, {V(x + 4)}, {V(x + 5)}')
    p(f'v_add_f32 {V(u1)}, {V(em + 4)}, {V(em + 5)}')
    p(f'v_add_f32 {V(sp)}, {V(sp)}, {V(u0)}')
    p(f'v_add_f32 {V(sm)}, {V(sm)}, {V(u1)}')
    p(f'v_add_f32 {V(u0)}, {V(x + 6)}, {V(x + 7)}')
    p(f'v_add_f32 {V(u1)}, {V(em + 6)}, {V(em + 7)}')
    p(f'v_add_f32 {V(sp)}, {V(sp)}, {V(u0)}')
    p(f'v_add_f32 {V(sm)}, {V(sm)}, {V(u1)}')
    p(f'v_mov_b32 {V(u0)}, {V(sp)}')
    p(f'v_mov_b32 {V(u1)}, {V(sm)}')
    p(f'v_permlane32_swap_b32 {V(sp)}, {V(u0)}')
    p(f'v_permlane32_swap_b32 {V(sm)}, {V(u1)}')
    p(f'v_add_f32 {V(sp)}, {V(sp)}, {V(u0)}')
    p(f'v_add_f32 {V(sm)}, {V(sm)}, {V(u1)}')
    p(f'v_rcp_f32 {V(sp)}, {V(sp)}')
    p(f'v_rcp_f32 {V(sm)}, {V(sm)}')
    for i in range(8):
        p(f'v_mul_f32 {V(x + i)}, {V(x + i)}, {V(sp)}')
        p(f'v_mul_f32 {V(em + i)}, {V(em + i)}, {V(sm)}')
    for i in range(4):
        p(f'v_cvt_pk_bf16_f32 {V(Fp + i)}, {V(x + 2 * i)}, {V(x + 2 * i + 1)}')
        p(f'v_cvt_pk_bf16_f32 {V(Fm + i)}, {V(em + 2 * i)}, {V(em + 2 * i + 1)}')


def load_wphi(p, vPHI, vt, vlane):
    p(f'v_and_b32 {V(vt)}, 15, {V(vlane)}')
    p(f'v_lshlrev_b32 {V(vt)}, 1, {V(vt)}')
    p(f'v_lshrrev_b32 {V(vt + 1)}, 5, {V(vlane)}')
    p(f'v_lshl_add_u32 {V(vt)}, {V(vt + 1)}, 7, {V(vt)}')
    p(f's_lshl_b32 {S(sT0)}, {S(sH)}, 9')
    for j in range(8):
        d = (j & 3) + 8 * (j >> 2)
        p(f'buffer_load_ushort {V(vPHI + j)}, {V(vt)}, {S(R_PHI, 4)}, {S(sT0)} offen offset:{d * 32}')


def combine8(p, r):
    for i in range(4):
        p(f'v_lshl_or_b32 {V(r + i)}, {V(r + 2 * i + 1)}, 16, {V(r + 2 * i)}')


def gen_k1(fused=False):
    p = Prog()
    va = RegAlloc('v', 1, 256)
    vLANE = va.alloc()
    vL16 = va.alloc()
    vT = va.alloc(8, 2)
    vPHI = va.alloc(8, 4)
    vIP = va.alloc(4, 4)
    vIM = va.alloc(4, 4)
    PK = va.alloc(24, 4)
    Qf, Kf, QAf, KAf, Vp = PK, PK + 4, PK + 8, PK + 12, PK + 16
    base = va.next
    vXa = va.alloc(12)
    vWa = va.alloc(9)
    FR = [va.alloc(20, 4), va.alloc(20, 4)]
    ACC = va.alloc(96, 4)
    PK1 = va.alloc(24, 4)
    vb = RegAlloc('v', base, 256)
    vXoA, vXoB, vWo = vb.alloc(), vb.alloc(), vb.alloc()
    vGo, vRo = vb.alloc(), vb.alloc()
    GX = vb.alloc(8, 4)
    GW = vb.alloc(8, 4)
    WR = vb.alloc(8, 4)
    vc = RegAlloc('v', base, 256)
    D1 = vc.alloc(16, 4)
    D2 = vc.alloc(16, 4)
    KV = vc.alloc(16, 4)
    Fp, Fm = vc.alloc(4, 4), vc.alloc(4, 4)
    G = vc.alloc(8, 4)
    VA = vc.alloc(8, 4)
    TMP = vc.alloc(24, 4)
    vO1, vO2 = vc.alloc(), vc.alloc()

    END = 'L_k1_end'
    common_prologue(p, 256, END)
    head_qb(p)
    p(f'v_and_b32 {V(vLANE)}, 63, v0')
    p(f'v_lshrrev_b32 {V(vT)}, 6, v0')
    p(f'v_lshlrev_b32 {V(vL16)}, 4, {V(vLANE)}')
    p(f'v_readfirstlane_b32 {S(sW)}, {V(vT)}')
    p(f's_mov_b32 {S(sL2E)}, {hex(f2u(LOG2E))}')
    p('s_waitcnt lgkmcnt(0)')
    stamp_init(p)
    srd(p, R_X, P_X, 2048 * 1024)
    srd(p, R_WS, P_WS, WS_SIZE)
    srd(p, R_PHI, P_PHI, 16384)
    srd(p, R_G, P_GW, 1024)
    srd(p, R_DBG, P_DBG, 256)
    p(f's_and_b32 {S(sT0)}, {S(sW)}, 3')
    p(f's_lshl_b32 {S(sT0)}, {S(sT0)}, 1')
    p(f's_lshr_b32 {S(sT1)}, {S(sW)}, 2')
    p(f's_add_u32 {S(sRT)}, {S(sT0)}, {S(sT1)}')
    p(f's_lshl_b32 {S(sT0)}, {S(sQB)}, 3')
    p(f's_add_u32 {S(sTI)}, {S(sT0)}, {S(sRT)}')
    p(f's_cmp_ge_u32 {S(sW)}, 4')
    p('s_cbranch_scc1 L_k1_loader')

    def consts():
        load_wphi(p, vPHI, vT, vLANE)
        p(f'v_and_b32 {V(vT)}, 31, {V(vLANE)}')
        p(f'v_lshrrev_b32 {V(vT + 1)}, 5, {V(vLANE)}')
        p(f'v_lshlrev_b32 {V(vT + 1)}, 2, {V(vT + 1)}')
        p(f'v_sub_u32 {V(vT)}, {V(vT)}, {V(vT + 1)}')
        p(f'v_mov_b32 {V(vT + 2)}, 0x3f80')
        p(f'v_mov_b32 {V(vT + 3)}, 0x3f800000')
        for (dst, add) in ((vIP, 0), (vIM, 16)):
            for r in range(4):
                j0 = 2 * r
                f0 = (j0 & 3) + 8 * (j0 >> 2) + add
                p(f'v_cmp_eq_u32 vcc, {f0}, {V(vT)}')
                p(f'v_cndmask_b32 {V(dst + r)}, 0, {V(vT + 2)}, vcc')
                p(f'v_cmp_eq_u32 vcc, {f0 + 1}, {V(vT)}')
                p(f'v_cndmask_b32 {V(dst + r)}, {V(dst + r)}, {V(vT + 3)}, vcc')

    if fused:
        p(f's_or_b32 {S(sT0)}, {S(sWG)}, {S(sW)}')
        p(f's_cmp_lg_u32 {S(sT0)}, 0')
        p('s_cbranch_scc1 L_k1_nonon')
        p(f's_memrealtime {S(sEX, 2)}')
        p('s_waitcnt lgkmcnt(0)')
        p(f's_or_b32 {S(sEX + 1)}, {S(sEX + 1)}, 0x80000000')
        p(f'v_mov_b32 {V(vT)}, {S(sEX)}')
        p(f'v_mov_b32 {V(vT + 1)}, {S(sEX + 1)}')
        p(f'v_mov_b32 {V(vT + 2)}, 0')
        p('s_mov_b64 exec, 1')
        p(f'buffer_store_dwordx2 {V(vT, 2)}, {V(vT + 2)}, {S(R_DBG, 4)}, 0 offen sc1')
        p('s_mov_b64 exec, -1')
        p.label('L_k1_nonon')
    consts()
    p(f'v_and_b32 {V(vT)}, 31, {V(vLANE)}')
    p(f'v_lshrrev_b32 {V(vT + 1)}, 5, {V(vLANE)}')
    p(f'v_bfe_u32 {V(vT + 2)}, {V(vT)}, 1, 3')
    p(f'v_lshlrev_b32 {V(vT + 3)}, 7, {V(vT)}')
    p(f's_lshl_b32 {S(sT0)}, {S(sW)}, 13')
    p(f'v_add_u32 {V(vT + 3)}, {S(sT0)}, {V(vT + 3)}')
    for i in range(4):
        p(f'v_or_b32 {V(vT + 4)}, {2 * i}, {V(vT + 1)}')
        p(f'v_xor_b32 {V(vT + 4)}, {V(vT + 4)}, {V(vT + 2)}')
        p(f'v_lshl_add_u32 {V(vXa + i)}, {V(vT + 4)}, 4, {V(vT + 3)}')
        p(f'v_add_u32 {V(vXa + 4 + i)}, {SLOT}, {V(vXa + i)}')
        p(f'v_add_u32 {V(vXa + 8 + i)}, {2 * SLOT}, {V(vXa + i)}')
    SR = [(0, 1), (3, 4), (2, 5)]
    p(f'v_and_b32 {V(vT)}, 15, {V(vLANE)}')
    p(f'v_lshlrev_b32 {V(vT)}, 3, {V(vT)}')
    p(f'v_lshrrev_b32 {V(vT + 1)}, 5, {V(vLANE)}')
    p(f'v_lshl_add_u32 {V(vT)}, {V(vT + 1)}, 8, {V(vT)}')
    p(f'v_bfe_u32 {V(vT + 2)}, {V(vLANE)}, 4, 1')
    for T in range(3):
        d = (SR[T][1] - SR[T][0]) * SUBR
        p(f'v_mul_u32_u24 {V(vT + 3)}, {d}, {V(vT + 2)}')
        p(f'v_add_u32 {V(vT + 3)}, {V(vT + 3)}, {V(vT)}')
        for sl in range(3):
            p(f'v_add_u32 {V(vWa + 3 * sl + T)}, {sl * SLOT + WOFF + SR[T][0] * SUBR}, {V(vT + 3)}')

    def reads(s):
        if os.environ.get('K1_NOREAD') and s > 0:
            return
        c, i = s // 4, s % 4
        sl = c % 3
        F = FR[s & 1]
        p(f'ds_read_b128 {V(F, 4)}, {V(vXa + 4 * sl + i)}')
        p(f'ds_read_b64_tr_b16 {V(F + 8, 2)}, {V(vWa + 3 * sl + 0)} offset:{i * 512}')
        p(f'ds_read_b64_tr_b16 {V(F + 10, 2)}, {V(vWa + 3 * sl + 0)} offset:{i * 512 + 128}')
        p(f'ds_read_b128 {V(F + 4, 4)}, {V(vXa + 4 * sl + i)} offset:4096')
        for T in (1, 2):
            p(f'ds_read_b64_tr_b16 {V(F + 8 + 4 * T, 2)}, {V(vWa + 3 * sl + T)} offset:{i * 512}')
            p(f'ds_read_b64_tr_b16 {V(F + 10 + 4 * T, 2)}, {V(vWa + 3 * sl + T)} offset:{i * 512 + 128}')

    def mfmas(s):
        if os.environ.get('K1_NOMFMA') and s > 0:
            return
        F = FR[s & 1]
        for T in range(3):
            for rt in range(2):
                acc = ACC + (rt * 3 + T) * 16
                c = '0' if s == 0 else V(acc, 16)
                X = V(F + 4 * rt, 4)
                W = V(F + 8 + 4 * T, 4)
                if T < 2:
                    p(f'v_mfma_f32_32x32x16_bf16 {V(acc, 16)}, {W}, {X}, {c}')
                else:
                    p(f'v_mfma_f32_32x32x16_bf16 {V(acc, 16)}, {X}, {W}, {c}')

    p('s_barrier')
    stamp(p, 1)
    reads(0)
    for s in range(32):
        if s + 1 < 32:
            if (s + 1) % 4 == 0:
                p('s_waitcnt lgkmcnt(0)')
                p('s_barrier')
                if (s + 1) // 4 in (1, 2, 3, 5, 7) and not fused:
                    stamp(p, {1: 2, 2: 3, 3: 4, 5: 5, 7: 6}[(s + 1) // 4])
                reads(s + 1)
            else:
                reads(s + 1)
                p('s_waitcnt lgkmcnt(8)')
        else:
            p('s_waitcnt lgkmcnt(0)')
        mfmas(s)
    stamp(p, 2 if fused else 7)
    for rt in (1, 0):
        dst = PK1 if rt else PK
        a1, a2, a3 = ACC + (rt * 3) * 16, ACC + (rt * 3 + 1) * 16, ACC + (rt * 3 + 2) * 16
        for i in range(8):
            p(f'v_mul_f32 {V(a1 + i)}, {hex(f2u(QSCALE))}, {V(a1 + i)}')
        for i in range(8):
            p(f'v_cvt_pk_bf16_f32 {V(dst + i)}, {V(a1 + 2 * i)}, {V(a1 + 2 * i + 1)}')
        for i in range(8):
            p(f'v_cvt_pk_bf16_f32 {V(dst + 8 + i)}, {V(a2 + 2 * i)}, {V(a2 + 2 * i + 1)}')
        for i in range(8):
            p(f'v_cvt_pk_bf16_f32 {V(dst + 16 + i)}, {V(a3 + 2 * i)}, {V(a3 + 2 * i + 1)}')
        if rt:
            p(f's_mul_i32 {S(sT0)}, {S(sW)}, 6144')
            p(f's_add_u32 {S(sT0)}, {S(sT0)}, {HO}')
            p(f'v_add_u32 {V(vT)}, {S(sT0)}, {V(vL16)}')
            for j in range(6):
                p(f'ds_write_b128 {V(vT)}, {V(PK1 + 4 * j, 4)} offset:{j * 1024}')
    p('s_waitcnt lgkmcnt(0) vmcnt(0)')
    p('s_barrier')
    p('s_branch L_k1_common')

    p.label('L_k1_loader')
    p(f's_sub_u32 {S(sT3)}, {S(sW)}, 4')
    p(f's_cmp_lt_u32 {S(sT3)}, 2')
    p(f's_cselect_b32 {S(R_W)}, {S(P_BW)}, {S(P_AW)}')
    p(f's_cselect_b32 {S(R_W + 1)}, {S(P_BW + 1)}, {S(P_AW + 1)}')
    p(f's_and_b32 {S(R_W + 1)}, {S(R_W + 1)}, 0xffff')
    p(f's_mov_b32 {S(R_W + 2)}, {512 * 3072}')
    p(f's_mov_b32 {S(R_W + 3)}, 0x00020000')
    p(f'v_lshrrev_b32 {V(vT)}, 3, {V(vLANE)}')
    p(f'v_and_b32 {V(vT + 1)}, 7, {V(vLANE)}')
    p(f'v_lshrrev_b32 {V(vT + 2)}, 1, {V(vT)}')
    p(f'v_xor_b32 {V(vT + 3)}, {V(vT + 1)}, {V(vT + 2)}')
    p(f'v_lshlrev_b32 {V(vT + 3)}, 4, {V(vT + 3)}')
    p(f'v_lshl_add_u32 {V(vXoA)}, {V(vT)}, 10, {V(vT + 3)}')
    p(f'v_xor_b32 {V(vXoB)}, 64, {V(vXoA)}')
    p(f'v_lshrrev_b32 {V(vT)}, 1, {V(vLANE)}')
    p(f'v_mul_u32_u24 {V(vT)}, 3072, {V(vT)}')
    p(f'v_and_b32 {V(vT + 1)}, 1, {V(vLANE)}')
    p(f'v_lshl_add_u32 {V(vWo)}, {V(vT + 1)}, 4, {V(vT)}')
    sXB, sWB, sXL, sWL = 84, 85, 86, 87
    p(f's_lshl_b32 {S(sXB)}, {S(sQB)}, 18')
    p(f's_lshl_b32 {S(sT0)}, {S(sT3)}, 16')
    p(f's_add_u32 {S(sXB)}, {S(sXB)}, {S(sT0)}')
    p(f's_lshl_b32 {S(sXL)}, {S(sT3)}, 13')
    p(f's_and_b32 {S(sT0)}, {S(sT3)}, 1')
    p(f's_mul_i32 {S(sWB)}, {S(sT0)}, {32 * 3072}')
    p(f's_lshl_b32 {S(sT1)}, {S(sH)}, 5')
    p(f's_add_u32 {S(sWB)}, {S(sWB)}, {S(sT1)}')
    p(f's_lshl_b32 {S(sWL)}, {S(sT0)}, 10')
    p(f's_lshr_b32 {S(sT1)}, {S(sT3)}, 1')
    p(f's_mul_i32 {S(sT1)}, {S(sT1)}, {3 * SUBR}')
    p(f's_add_u32 {S(sWL)}, {S(sWL)}, {S(sT1)}')
    p(f's_add_u32 {S(sWL)}, {S(sWL)}, {WOFF}')

    sROT, sXC, sWC = 79, 82, 83
    p(f's_and_b32 {S(sROT)}, {S(sH)}, 3')
    p(f's_lshl_b32 {S(sROT)}, {S(sROT)}, 1')
    p(f's_add_u32 {S(sROT)}, {S(sROT)}, {S(sQB)}')
    if os.environ.get('NOROT'):
        p(f's_mov_b32 {S(sROT)}, 0')

    def issue(c):
        sl = c % 3
        p(f's_add_u32 {S(sT0)}, {S(sROT)}, {c}')
        p(f's_and_b32 {S(sT0)}, {S(sT0)}, 7')
        p(f's_mul_i32 {S(sWC)}, {S(sT0)}, {64 * 3072}')
        p(f's_add_u32 {S(sWC)}, {S(sWC)}, {S(sWB)}')
        p(f's_lshl_b32 {S(sXC)}, {S(sT0)}, 7')
        p(f's_add_u32 {S(sXC)}, {S(sXC)}, {S(sXB)}')
        for jj in range(3):
            p(f's_add_u32 m0, {S(sWL)}, {sl * SLOT + jj * SUBR}')
            p(f's_add_u32 {S(sOFF)}, {S(sWC)}, {jj * 1024}')
            p(f'buffer_load_dwordx4 {V(vWo)}, {S(R_W, 4)}, {S(sOFF)} offen lds')
        for j in range(8):
            p(f's_add_u32 m0, {S(sXL)}, {sl * SLOT + j * 1024}')
            p(f's_add_u32 {S(sOFF)}, {S(sXC)}, {j * 8192}')
            p(f'buffer_load_dwordx4 {V(vXoB if j & 1 else vXoA)}, {S(R_X, 4)}, {S(sOFF)} offen lds')

    issue(0)
    issue(1)
    stamp(p, 1)
    NS = 12
    for c in range(8):
        if c <= 5:
            n = 11 + (8 if c == 1 else 0)
        elif c == 6:
            n = 11 + NS
        else:
            n = NS
        p(f's_waitcnt vmcnt({n})')
        p('s_barrier')
        if c == 0:
            issue(2)
            consts()
        if 1 <= c <= 5:
            issue(c + 2)
        if c == 5:
            p(f'v_lshrrev_b32 {V(vT)}, 5, {V(vLANE)}')
            p(f'v_and_b32 {V(vT + 1)}, 31, {V(vLANE)}')
            p(f'v_lshlrev_b32 {V(vT + 1)}, 5, {V(vT + 1)}')
            p(f'v_lshl_add_u32 {V(vGo)}, {V(vT)}, 10, {V(vT + 1)}')
            p(f's_lshl_b32 {S(sT0)}, {S(sQB)}, 8')
            p(f's_lshl_b32 {S(sT1)}, {S(sH)}, 3')
            p(f's_add_u32 {S(sT0)}, {S(sT0)}, {S(sT1)}')
            p(f's_lshl_b32 {S(sT1)}, {S(sT3)}, 1')
            p(f's_add_u32 {S(sOFF2)}, {S(sT0)}, {S(sT1)}')
            p(f's_lshl_b32 {S(sT0)}, {S(sOFF2)}, 10')
            p(f'buffer_load_dwordx4 {V(GX, 4)}, {V(vGo)}, {S(R_X, 4)}, {S(sT0)} offen')
            p(f'buffer_load_dwordx4 {V(GX + 4, 4)}, {V(vGo)}, {S(R_X, 4)}, {S(sT0)} offen offset:16')
            p(f'buffer_load_dwordx4 {V(GW, 4)}, {V(vT + 1)}, {S(R_G, 4)}, 0 offen')
            p(f'buffer_load_dwordx4 {V(GW + 4, 4)}, {V(vT + 1)}, {S(R_G, 4)}, 0 offen offset:16')
            p(f's_cmp_lt_u32 {S(sWG)}, 128')
            p(f's_cselect_b32 {S(R_WO)}, {S(P_AWO)}, {S(P_BWO)}')
            p(f's_cselect_b32 {S(R_WO + 1)}, {S(P_AWO + 1)}, {S(P_BWO + 1)}')
            p(f's_and_b32 {S(R_WO + 1)}, {S(R_WO + 1)}, 0xffff')
            p(f's_mov_b32 {S(R_WO + 2)}, {512 * 1024}')
            p(f's_mov_b32 {S(R_WO + 3)}, 0x00020000')
            p(f's_lshl_b32 {S(sM0)}, {S(sWG)}, 2')
            p(f's_add_u32 {S(sM0)}, {S(sM0)}, {S(sT3)}')
            p(f's_bfe_u32 {S(sT0)}, {S(sM0)}, 0x50004')
            p(f's_lshl_b32 {S(sT0)}, {S(sT0)}, 14')
            p(f's_and_b32 {S(sT1)}, {S(sM0)}, 15')
            p(f's_lshl_b32 {S(sT1)}, {S(sT1)}, 6')
            p(f's_add_u32 {S(sT0)}, {S(sT0)}, {S(sT1)}')
            p(f's_add_u32 {S(sT1)}, {S(sT0)}, 8192')
            p(f'v_and_b32 {V(vT + 2)}, 31, {V(vLANE)}')
            p(f'v_lshlrev_b32 {V(vT + 2)}, 1, {V(vT + 2)}')
            p(f'v_lshl_add_u32 {V(vRo)}, {V(vT)}, 12, {V(vT + 2)}')
            for j in range(8):
                so = sT1 if j >= 4 else sT0
                p(f'buffer_load_ushort {V(WR + j)}, {V(vRo)}, {S(R_WO, 4)}, {S(so)} offen offset:{(j & 3) * 1024}')
    p('s_waitcnt vmcnt(0)')
    stamp(p, 2 if fused else 7)
    combine8(p, WR)
    p(f's_lshl_b32 {S(sT0)}, {S(sM0)}, 10')
    p(f's_add_u32 {S(sT0)}, {S(sT0)}, {WS_WO}')
    p(f'buffer_store_dwordx4 {V(WR, 4)}, {V(vL16)}, {S(R_WS, 4)}, {S(sT0)} offen')
    p(f'v_mov_b32 {V(vT)}, 0')
    for i in range(8):
        p(f'v_dot2_f32_bf16 {V(vT)}, {V(GX + i)}, {V(GW + i)}, {V(vT)}')
    p('s_nop 3')
    for sh in (1, 2, 4, 8):
        p(f'v_add_f32_dpp {V(vT)}, {V(vT)}, {V(vT)} row_ror:{sh} row_mask:0xf bank_mask:0xf')
    p(f'v_mov_b32 {V(vT + 1)}, {V(vT)}')
    p(f'v_permlane16_swap_b32 {V(vT)}, {V(vT + 1)}')
    p(f'v_add_f32 {V(vT)}, {V(vT)}, {V(vT + 1)}')
    p(f'v_cvt_pk_bf16_f32 {V(vT)}, {V(vT)}, {V(vT)}')
    p(f'v_and_b32 {V(vT)}, 0xffff0000, {V(vT)}')
    p(f'v_mul_f32 {V(vT)}, {hex(f2u(-LOG2E))}, {V(vT)}')
    p(f'v_exp_f32 {V(vT)}, {V(vT)}')
    p(f'v_add_f32 {V(vT)}, 1.0, {V(vT)}')
    p(f'v_rcp_f32 {V(vT)}, {V(vT)}')
    p(f'v_cvt_pk_bf16_f32 {V(vT)}, {V(vT)}, {V(vT)}')
    p(f'v_and_b32 {V(vT)}, 0xffff0000, {V(vT)}')
    p(f'v_and_b32 {V(vT + 1)}, 31, {V(vLANE)}')
    p(f'v_lshlrev_b32 {V(vT + 1)}, 26, {V(vT + 1)}')
    p(f'v_lshrrev_b32 {V(vT + 2)}, 5, {V(vLANE)}')
    p(f'v_lshl_add_u32 {V(vT + 1)}, {V(vT + 2)}, 2, {V(vT + 1)}')
    p(f's_lshl_b32 {S(sT0)}, {S(sOFF2)}, 2')
    p(f's_add_u32 {S(sT0)}, {S(sT0)}, {WS_G}')
    p(f'buffer_store_dword {V(vT)}, {V(vT + 1)}, {S(R_WS, 4)}, {S(sT0)} offen')
    p('s_barrier')
    p(f's_mul_i32 {S(sT0)}, {S(sT3)}, 6144')
    p(f's_add_u32 {S(sT0)}, {S(sT0)}, {HO}')
    p(f'v_add_u32 {V(vT)}, {S(sT0)}, {V(vL16)}')
    for j in range(6):
        p(f'ds_read_b128 {V(PK + 4 * j, 4)}, {V(vT)} offset:{j * 1024}')
    p('s_waitcnt lgkmcnt(0)')

    p.label('L_k1_common')
    if fused:
        R = dict(vLANE=vLANE, vL16=vL16, vT=vT, vPHI=vPHI, vIP=vIP, vIM=vIM, Qf=Qf, Kf=Kf, QAf=QAf, KAf=KAf, Vp=Vp, base=base)
        fused_tail(p, R)
        p.label(END)
        p('s_endpgm')
        return p
    stamp(p, 8)
    combine8(p, vPHI)
    p(f's_lshl_b32 {S(sT0)}, {S(sH)}, 6')
    p(f's_add_u32 {S(sT0)}, {S(sT0)}, {S(sTI)}')
    p(f's_lshl_b32 {S(sT0)}, {S(sT0)}, 10')
    p(f's_add_u32 {S(sT1)}, {S(sT0)}, {WS_K}')
    p(f'buffer_store_dwordx4 {V(Kf, 4)}, {V(vL16)}, {S(R_WS, 4)}, {S(sT1)} offen')
    p(f'v_and_b32 {V(vO1)}, 15, {V(vLANE)}')
    p(f'v_lshlrev_b32 {V(vO1)}, 4, {V(vO1)}')
    p(f'v_lshrrev_b32 {V(vO2)}, 5, {V(vLANE)}')
    p(f'v_lshl_add_u32 {V(vO1)}, {V(vO2)}, 8, {V(vO1)}')
    p(f'v_bfe_u32 {V(vO2)}, {V(vLANE)}, 4, 1')
    p(f'v_lshl_add_u32 {V(vO1)}, {V(vO2)}, 30, {V(vO1)}')
    p(f's_add_u32 {S(sT1)}, {S(sT0)}, {WS_V}')
    p(f'buffer_store_dwordx4 {V(Vp, 4)}, {V(vO1)}, {S(R_WS, 4)}, {S(sT1)} offen')
    p(f'buffer_store_dwordx4 {V(Vp + 4, 4)}, {V(vO1)}, {S(R_WS, 4)}, {S(sT1)} offen offset:512')
    p(f's_add_u32 {S(sT1)}, {S(sT0)}, {WS_Q}')
    p(f'buffer_store_dwordx4 {V(Qf, 4)}, {V(vL16)}, {S(R_WS, 4)}, {S(sT1)} offen')
    p(f's_add_u32 {S(sT1)}, {S(sT0)}, {WS_QA}')
    p(f'buffer_store_dwordx4 {V(QAf, 4)}, {V(vL16)}, {S(R_WS, 4)}, {S(sT1)} offen')
    p(f'v_mfma_f32_32x32x16_bf16 {V(D1, 16)}, {V(vPHI, 4)}, {V(KAf, 4)}, 0')
    p(f'v_cmp_eq_u32 vcc, 0, {V(vO2)}')
    p(f'v_mov_b32 {V(vO2)}, 0x3f803f80')
    for i in range(8):
        p(f'v_cndmask_b32 {V(VA + i)}, {V(Vp + i)}, {V(vO2)}, vcc')
    softmax_pair(p, D1, Fp, Fm, TMP)
    p(f'v_mfma_f32_32x32x16_bf16 {V(D2, 16)}, {V(Fp, 4)}, {V(vIP, 4)}, 0')
    p(f'v_mfma_f32_32x32x16_bf16 {V(D2, 16)}, {V(Fm, 4)}, {V(vIM, 4)}, {V(D2, 16)}')
    for i in range(8):
        p(f'v_cvt_pk_bf16_f32 {V(G + i)}, {V(D2 + 2 * i)}, {V(D2 + 2 * i + 1)}')
    p(f'v_mfma_f32_32x32x16_bf16 {V(KV, 16)}, {V(G, 4)}, {V(VA, 4)}, 0')
    p(f'v_mfma_f32_32x32x16_bf16 {V(KV, 16)}, {V(G + 4, 4)}, {V(VA + 4, 4)}, {V(KV, 16)}')
    p(f'v_lshlrev_b32 {V(vO1)}, 3, {V(vLANE)}')
    p(f's_lshl_b32 {S(sT0)}, {S(sW)}, 12')
    p(f'v_add_u32 {V(vO2)}, {S(sT0)}, {V(vO1)}')
    for i in range(8):
        p(f'ds_write_b64 {V(vO2)}, {V(KV + 2 * i, 2)} offset:{i * 512}')
    p('s_waitcnt lgkmcnt(0)')
    p('s_barrier')
    p(f's_lshl_b32 {S(sT0)}, {S(sW)}, 9')
    p(f'v_add_u32 {V(vO2)}, {S(sT0)}, {V(vO1)}')
    for q in range(8):
        p(f'ds_read_b64 {V(D1 + 2 * q, 2)}, {V(vO2)} offset:{q * 4096}')
    p('s_waitcnt lgkmcnt(0)')
    for q in (0, 4):
        p(f'v_pk_add_f32 {V(D1 + 2 * q, 2)}, {V(D1 + 2 * q, 2)}, {V(D1 + 2 * q + 2, 2)}')
        p(f'v_pk_add_f32 {V(D1 + 2 * q + 4, 2)}, {V(D1 + 2 * q + 4, 2)}, {V(D1 + 2 * q + 6, 2)}')
        p(f'v_pk_add_f32 {V(D1 + 2 * q, 2)}, {V(D1 + 2 * q, 2)}, {V(D1 + 2 * q + 4, 2)}')
    p(f'v_pk_add_f32 {V(D1, 2)}, {V(D1, 2)}, {V(D1 + 8, 2)}')
    p(f's_lshl_b32 {S(sT0)}, {S(sH)}, 3')
    p(f's_add_u32 {S(sT0)}, {S(sT0)}, {S(sQB)}')
    p(f's_lshl_b32 {S(sT0)}, {S(sT0)}, 12')
    p(f's_add_u32 {S(sT0)}, {S(sT0)}, {WS_KVP}')
    p(f'buffer_store_dwordx2 {V(D1, 2)}, {V(vO2)}, {S(R_WS, 4)}, {S(sT0)} offen')
    stamp_flush(p, 0, TMP, 8)
    p.label(END)
    p('s_endpgm')
    return p


L_DUMMY = L_KVS + 2048
LDS12 = LDS1
SPIN_MAX = 1 << 16


def fused_tail(p, R):
    vLANE, vL16, vT, vPHI, vIP, vIM = R['vLANE'], R['vL16'], R['vT'], R['vPHI'], R['vIP'], R['vIM']
    Qf, Kf, QAf, KAf, Vp, base = R['Qf'], R['Kf'], R['QAf'], R['KAf'], R['Vp'], R['base']
    va = RegAlloc('v', base, 256)
    C = va.alloc(16, 4)
    SB = [va.alloc(16, 4), va.alloc(16, 4)]
    O = va.alloc(16, 4)
    P = va.alloc(8, 4)
    KF = [va.alloc(4, 4), va.alloc(4, 4)]
    VF = [va.alloc(8, 4), va.alloc(8, 4)]
    endA = va.next
    vKa, vVa0, vVa1 = va.alloc(), va.alloc(), va.alloc()
    vKn, vVn0, vVn1 = va.alloc(), va.alloc(), va.alloc()
    vVb0, vVb1 = va.alloc(), va.alloc()
    vVw, vFO, vZ, vL8 = va.alloc(), va.alloc(), va.alloc(), va.alloc()
    vFL = va.alloc(2, 2)
    vNON = va.alloc(2, 2)
    Fp, Fm = va.alloc(4, 4), va.alloc(4, 4)
    PAY = va.alloc(56, 4)
    KP = va.alloc(16, 2)
    TMP = PAY
    KVF = PAY + 24
    vc = RegAlloc('v', base, endA)
    D1, D2, KV = vc.alloc(16, 4), vc.alloc(16, 4), vc.alloc(16, 4)
    G, VA = vc.alloc(8, 4), vc.alloc(8, 4)
    FKp, FKm = vc.alloc(4, 4), vc.alloc(4, 4)
    vO1, vO2 = vc.alloc(), vc.alloc()
    sIMG, sSCR, sHB, sRET, sFLG, sSPIN, sPROG = 84, 85, 86, 87, 79, 82, 83

    stamp(p, 3)
    p(f'v_mov_b32 {V(vZ)}, 0')
    p(f'buffer_load_dwordx2 {V(vNON, 2)}, {V(vZ)}, {S(R_DBG, 4)}, 0 offen sc1')
    combine8(p, vPHI)
    p(f's_lshl_b32 {S(sHB)}, {S(sH)}, 16')
    p(f's_lshl_b32 {S(sT0)}, {S(sTI)}, 10')
    p(f's_add_u32 {S(sIMG)}, {S(sHB)}, {S(sT0)}')
    p(f's_add_u32 {S(sT1)}, {S(sIMG)}, {WS_K}')
    p(f'buffer_store_dwordx4 {V(Kf, 4)}, {V(vL16)}, {S(R_WS, 4)}, {S(sT1)} offen sc1')
    p(f'v_and_b32 {V(vVw)}, 15, {V(vLANE)}')
    p(f'v_lshlrev_b32 {V(vVw)}, 4, {V(vVw)}')
    p(f'v_lshrrev_b32 {V(vO2)}, 5, {V(vLANE)}')
    p(f'v_lshl_add_u32 {V(vVw)}, {V(vO2)}, 8, {V(vVw)}')
    p(f'v_bfe_u32 {V(vO2)}, {V(vLANE)}, 4, 1')
    p(f'v_lshl_add_u32 {V(vO1)}, {V(vO2)}, 30, {V(vVw)}')
    p(f's_add_u32 {S(sT1)}, {S(sIMG)}, {WS_V}')
    p(f'buffer_store_dwordx4 {V(Vp, 4)}, {V(vO1)}, {S(R_WS, 4)}, {S(sT1)} offen sc1')
    p(f'buffer_store_dwordx4 {V(Vp + 4, 4)}, {V(vO1)}, {S(R_WS, 4)}, {S(sT1)} offen offset:512 sc1')
    p(f'v_mfma_f32_32x32x16_bf16 {V(D1, 16)}, {V(vPHI, 4)}, {V(KAf, 4)}, 0')
    p(f'v_add_u32 {V(vO1)}, {S(sT0)}, {V(vL16)}')
    p(f'ds_write_b128 {V(vO1)}, {V(Kf, 4)}')
    p(f's_mul_i32 {S(sT1)}, {S(sTI)}, {VSTR}')
    p(f's_add_u32 {S(sT1)}, {S(sT1)}, {L_V}')
    p(f'v_add_u32 {V(vO1)}, {S(sT1)}, {V(vVw)}')
    p(f'v_cmp_eq_u32 vcc, 0, {V(vO2)}')
    p(f'v_mov_b32 {V(vT)}, {L_DUMMY}')
    p(f'v_cndmask_b32 {V(vO1)}, {V(vT)}, {V(vO1)}, vcc')
    p(f'ds_write_b128 {V(vO1)}, {V(Vp, 4)}')
    p(f'ds_write_b128 {V(vO1)}, {V(Vp + 4, 4)} offset:512')
    p(f'v_mov_b32 {V(vT)}, 1024')
    p(f'v_add_u32 {V(vT + 1)}, 512, {V(vVw)}')
    p(f'v_cndmask_b32 {V(vVb0)}, {V(vT)}, {V(vVw)}, vcc')
    p(f'v_cndmask_b32 {V(vVb1)}, {V(vT)}, {V(vT + 1)}, vcc')
    p(f'v_mov_b32 {V(vO2)}, 0x3f803f80')
    for i in range(8):
        p(f'v_cndmask_b32 {V(VA + i)}, {V(Vp + i)}, {V(vO2)}, vcc')
    for i in range(4):
        p(f'v_mov_b32 {V(G + i)}, 0x3f803f80')
    p(f'v_mul_u32_u24 {V(vT)}, {VSTR}, {V(vLANE)}')
    p(f'v_add_u32 {V(vT)}, {L_V + 1024}, {V(vT)}')
    p(f'ds_write_b128 {V(vT)}, {V(G, 4)}')
    p(f'v_lshlrev_b32 {V(vL8)}, 3, {V(vLANE)}')
    p(f'v_and_b32 {V(vFO)}, 56, {V(vL8)}')
    softmax_pair(p, D1, FKp, FKm, TMP)
    p(f'v_mfma_f32_32x32x16_bf16 {V(D2, 16)}, {V(FKp, 4)}, {V(vIP, 4)}, 0')
    p(f'v_mfma_f32_32x32x16_bf16 {V(D2, 16)}, {V(FKm, 4)}, {V(vIM, 4)}, {V(D2, 16)}')
    for i in range(8):
        p(f'v_cvt_pk_bf16_f32 {V(G + i)}, {V(D2 + 2 * i)}, {V(D2 + 2 * i + 1)}')
    p(f'v_mfma_f32_32x32x16_bf16 {V(KV, 16)}, {V(G, 4)}, {V(VA, 4)}, 0')
    p(f'v_mfma_f32_32x32x16_bf16 {V(KV, 16)}, {V(G + 4, 4)}, {V(VA + 4, 4)}, {V(KV, 16)}')
    p(f's_cmp_lt_u32 {S(sQB)}, 4')
    p(f's_cselect_b32 {S(sSCR)}, 32768, 0')
    p(f's_lshl_b32 {S(sT0)}, {S(sW)}, 12')
    p(f's_add_u32 {S(sT0)}, {S(sT0)}, {S(sSCR)}')
    p(f'v_add_u32 {V(vO2)}, {S(sT0)}, {V(vL8)}')
    for i in range(8):
        p(f'ds_write_b64 {V(vO2)}, {V(KV + 2 * i, 2)} offset:{i * 512}')
    p('s_waitcnt vmcnt(0) lgkmcnt(0)')
    p(f's_mov_b32 {S(sSPIN)}, 0')
    p.label('L_f_non')
    p(f'v_readfirstlane_b32 {S(sT0)}, {V(vNON + 1)}')
    p(f's_cmp_lg_u32 {S(sT0)}, 0')
    p('s_cbranch_scc1 L_f_non_ok')
    p('s_sleep 8')
    p(f'buffer_load_dwordx2 {V(vNON, 2)}, {V(vZ)}, {S(R_DBG, 4)}, 0 offen sc1')
    p('s_waitcnt vmcnt(0)')
    p(f's_add_u32 {S(sSPIN)}, {S(sSPIN)}, 1')
    p(f's_cmp_lt_u32 {S(sSPIN)}, {SPIN_MAX}')
    p('s_cbranch_scc1 L_f_non')
    p.label('L_f_non_ok')
    p('s_barrier')
    stamp(p, 4)
    p(f's_lshl_b32 {S(sFLG)}, {S(sH)}, 8')
    p(f's_add_u32 {S(sFLG)}, {S(sFLG)}, {WS_FLG}')

    def signal(off, lbl):
        p(f's_cmp_lg_u32 {S(sW)}, 0')
        p(f's_cbranch_scc1 {lbl}')
        p(f's_lshl_b32 {S(sT0)}, {S(sQB)}, 3')
        p(f'v_mov_b32 {V(vT)}, {S(sT0)}')
        p(f's_mov_b64 exec, 1')
        p(f'buffer_store_dwordx2 {V(vNON, 2)}, {V(vT)}, {S(R_WS, 4)}, {S(sFLG)} offen offset:{off} sc1')
        p(f's_mov_b64 exec, -1')
        p.label(lbl)

    signal(0, 'L_f_nosig1')
    p(f's_lshl_b32 {S(sT0)}, {S(sW)}, 9')
    p(f's_add_u32 {S(sT1)}, {S(sT0)}, {S(sSCR)}')
    p(f'v_add_u32 {V(vO2)}, {S(sT1)}, {V(vL8)}')
    for q in range(8):
        p(f'ds_read_b64 {V(D1 + 2 * q, 2)}, {V(vO2)} offset:{q * 4096}')
    p(f'v_mfma_f32_32x32x16_bf16 {V(D2, 16)}, {V(vPHI, 4)}, {V(QAf, 4)}, 0')
    p(f'v_mfma_f32_32x32x16_bf16 {V(KV, 16)}, {V(Kf, 4)}, {V(Qf, 4)}, 0')
    p('s_waitcnt lgkmcnt(0)')
    for q in (0, 4):
        p(f'v_pk_add_f32 {V(D1 + 2 * q, 2)}, {V(D1 + 2 * q, 2)}, {V(D1 + 2 * q + 2, 2)}')
        p(f'v_pk_add_f32 {V(D1 + 2 * q + 4, 2)}, {V(D1 + 2 * q + 4, 2)}, {V(D1 + 2 * q + 6, 2)}')
        p(f'v_pk_add_f32 {V(D1 + 2 * q, 2)}, {V(D1 + 2 * q, 2)}, {V(D1 + 2 * q + 4, 2)}')
    p(f'v_pk_add_f32 {V(G, 2)}, {V(D1, 2)}, {V(D1 + 8, 2)}')
    p(f's_lshl_b32 {S(sT1)}, {S(sH)}, 3')
    p(f's_add_u32 {S(sT1)}, {S(sT1)}, {S(sQB)}')
    p(f's_lshl_b32 {S(sT1)}, {S(sT1)}, 12')
    p(f's_add_u32 {S(sT1)}, {S(sT1)}, {S(sT0)}')
    p(f's_add_u32 {S(sT1)}, {S(sT1)}, {WS_KVP}')
    p(f'buffer_store_dwordx2 {V(G, 2)}, {V(vL8)}, {S(R_WS, 4)}, {S(sT1)} offen sc1')
    softmax_pair(p, D2, Fp, Fm, TMP)

    def rowmax_to(dst, sb, init):
        x = sb
        if init:
            p(f'v_max3_f32 {V(dst)}, {V(x)}, {V(x + 1)}, {V(x + 2)}')
            rest = list(range(3, 16))
        else:
            rest = list(range(16))
        while len(rest) >= 2:
            a, b = rest.pop(0), rest.pop(0)
            p(f'v_max3_f32 {V(dst)}, {V(dst)}, {V(x + a)}, {V(x + b)}')
        if rest:
            p(f'v_max_f32 {V(dst)}, {V(dst)}, {V(x + rest[0])}')

    def set_C(m):
        p(f'v_mov_b32 {V(vT + 1)}, {V(m)}')
        p(f'v_permlane32_swap_b32 {V(m)}, {V(vT + 1)}')
        p(f'v_max_f32 {V(m)}, {V(m)}, {V(vT + 1)}')
        p(f'v_sub_f32 {V(C)}, 0, {V(m)}')
        for i in range(1, 16):
            p(f'v_mov_b32 {V(C + i)}, {V(C)}')

    def zero_O():
        for i in range(16):
            p(f'v_mov_b32 {V(O + i)}, 0')

    rowmax_to(vT, KV, True)
    set_C(vT)
    zero_O()

    def poll_issue(off):
        p(f'buffer_load_dwordx2 {V(vFL, 2)}, {V(vFO)}, {S(R_WS, 4)}, {S(sFLG)} offen offset:{off} sc1')

    def poll_check():
        p('s_waitcnt vmcnt(0)')
        p(f'v_cmp_eq_u64 vcc, {V(vFL, 2)}, {V(vNON, 2)}')
        p(f's_cmp_eq_u64 vcc, -1')

    def spin(off, lbl):
        p(f's_mov_b32 {S(sSPIN)}, 0')
        p.label(lbl)
        poll_issue(off)
        poll_check()
        p(f's_cbranch_scc1 {lbl}_ok')
        p('s_sleep 4')
        p(f's_add_u32 {S(sSPIN)}, {S(sSPIN)}, 1')
        p(f's_cmp_lt_u32 {S(sSPIN)}, {SPIN_MAX}')
        p(f's_cbranch_scc1 {lbl}')
        p.label(lbl + '_ok')

    def payload_issue():
        p(f's_lshl_b32 {S(sT2)}, {S(sW)}, 10')
        p(f's_add_u32 {S(sT2)}, {S(sT2)}, {S(sHB)}')
        for k in range(7):
            p(f's_add_u32 {S(sT0)}, {S(sQB)}, {k + 1}')
            p(f's_and_b32 {S(sT0)}, {S(sT0)}, 7')
            p(f's_lshl_b32 {S(sT0)}, {S(sT0)}, 13')
            p(f's_add_u32 {S(sT0)}, {S(sT0)}, {S(sT2)}')
            p(f's_add_u32 {S(sT1)}, {S(sT0)}, {WS_K}')
            p(f'buffer_load_dwordx4 {V(PAY + 8 * k, 4)}, {V(vL16)}, {S(R_WS, 4)}, {S(sT1)} offen sc1')
            p(f's_add_u32 {S(sT1)}, {S(sT0)}, {WS_V}')
            p(f'buffer_load_dwordx4 {V(PAY + 8 * k + 4, 4)}, {V(vL16)}, {S(R_WS, 4)}, {S(sT1)} offen sc1')

    def run(start_expr_sgpr, count, state):
        p(f's_mov_b32 {S(sCNT)}, {count}')
        p(f's_mov_b32 {S(sST)}, {state}')
        p('s_branch L_f_run')
        p.label(f'L_f_ret{state}')

    p('s_barrier')
    stamp(p, 5)
    poll_issue(0)
    p(f's_lshl_b32 {S(sCH)}, {S(sQB)}, 1')
    p('s_setprio 3')
    p(f's_mov_b32 {S(sPROG)}, 100')
    run(None, 1, 0)
    poll_check()
    p(f's_cselect_b32 {S(sRET)}, 1, 0')
    p('s_cbranch_scc0 L_f_nopay')
    payload_issue()
    p.label('L_f_nopay')
    p('s_setprio 2')
    run(None, 1, 1)
    p(f's_cmp_lg_u32 {S(sRET)}, 0')
    p('s_cbranch_scc1 L_f_havepay')
    spin(0, 'L_f_spin1')
    payload_issue()
    p.label('L_f_havepay')
    stamp(p, 6)
    p(f's_mul_i32 {S(sT3)}, {S(sW)}, {VSTR}')
    p(f's_lshl_b32 {S(sT2)}, {S(sW)}, 10')
    for k in range(7):
        p(f's_add_u32 {S(sT0)}, {S(sQB)}, {k + 1}')
        p(f's_and_b32 {S(sT0)}, {S(sT0)}, 7')
        p(f's_lshl_b32 {S(sT1)}, {S(sT0)}, 13')
        p(f's_add_u32 {S(sT1)}, {S(sT1)}, {S(sT2)}')
        p(f'v_add_u32 {V(vT)}, {S(sT1)}, {V(vL16)}')
        p(f's_mul_i32 {S(sT1)}, {S(sT0)}, {8 * VSTR}')
        p(f's_add_u32 {S(sT1)}, {S(sT1)}, {S(sT3)}')
        p(f's_add_u32 {S(sT1)}, {S(sT1)}, {L_V}')
        p(f'v_add_u32 {V(vT + 1)}, {S(sT1)}, {V(vL16)}')
        p(f's_waitcnt vmcnt({12 - 2 * k})')
        p(f'ds_write_b128 {V(vT)}, {V(PAY + 8 * k, 4)}')
        p(f'ds_write_b128 {V(vT + 1)}, {V(PAY + 8 * k + 4, 4)}')
    p('s_waitcnt vmcnt(0) lgkmcnt(0)')
    p('s_barrier')
    stamp(p, 7)
    signal(128, 'L_f_nosig2')
    p('s_setprio 3')
    p(f's_mov_b32 {S(sPROG)}, 0')
    run(None, 3, 5)
    poll_issue(128)
    run(None, 4, 2)
    poll_check()
    p('s_cbranch_scc1 L_f_spin2_ok')
    spin(128, 'L_f_spin2')
    p(f's_lshl_b32 {S(sT0)}, {S(sH)}, 15')
    p(f's_lshl_b32 {S(sT1)}, {S(sW)}, 9')
    p(f's_add_u32 {S(sT0)}, {S(sT0)}, {S(sT1)}')
    for q in range(8):
        p(f's_add_u32 {S(sT1)}, {S(sT0)}, {WS_KVP + q * 4096}')
        p(f'buffer_load_dwordx2 {V(KP + 2 * q, 2)}, {V(vL8)}, {S(R_WS, 4)}, {S(sT1)} offen sc1')
    run(None, 7, 3)
    p(f'v_mov_b32 {V(vT)}, {hex(f2u(2.0 ** 64))}')
    p(f's_mov_b32 {S(sT0)}, 0x207')
    p(f'v_cmp_nle_f32 vcc, {V(O + 8)}, {V(vT)}')
    p(f's_mov_b64 {S(sMSK, 2)}, vcc')
    for i in range(8):
        p(f'v_cmp_class_f32 vcc, {V(O + i)}, {S(sT0)}')
        p(f's_or_b64 {S(sMSK, 2)}, {S(sMSK, 2)}, vcc')
    p(f's_cmp_eq_u64 {S(sMSK, 2)}, 0')
    p('s_cbranch_scc1 L_f_fin')
    p(f's_mov_b32 {S(sCNT)}, 0')
    p(f'v_mov_b32 {V(vT)}, 0xff800000')
    p.label('L_f_max')
    p(f's_lshl_b32 {S(sT0)}, {S(sCNT)}, 10')
    p(f'v_add_u32 {V(vKa)}, {S(sT0)}, {V(vL16)}')
    p(f'ds_read_b128 {V(KF[0], 4)}, {V(vKa)}')
    p('s_waitcnt lgkmcnt(0)')
    p(f'v_mfma_f32_32x32x16_bf16 {V(SB[0], 16)}, {V(KF[0], 4)}, {V(Qf, 4)}, 0')
    rowmax_to(vT, SB[0], False)
    p(f's_add_u32 {S(sCNT)}, {S(sCNT)}, 1')
    p(f's_cmp_lt_u32 {S(sCNT)}, 64')
    p('s_cbranch_scc1 L_f_max')
    set_C(vT)
    zero_O()
    p(f's_mov_b32 {S(sCH)}, 0')
    run(None, 16, 4)
    p('s_branch L_f_fin')

    def half_addr(k, v0, v1, sch):
        p(f's_lshl_b32 {S(sT0)}, {S(sch)}, 12')
        p(f's_mul_i32 {S(sT1)}, {S(sch)}, {4 * VSTR}')
        p(f's_add_u32 {S(sT1)}, {S(sT1)}, {L_V}')
        p(f'v_add_u32 {V(k)}, {S(sT0)}, {V(vL16)}')
        p(f'v_add_u32 {V(v0)}, {S(sT1)}, {V(vVb0)}')
        p(f'v_add_u32 {V(v1)}, {S(sT1)}, {V(vVb1)}')

    p.label('L_f_run')
    half_addr(vKa, vVa0, vVa1, sCH)
    p(f'ds_read_b128 {V(KF[0], 4)}, {V(vKa)}')
    p(f'ds_read_b128 {V(KF[1], 4)}, {V(vKa)} offset:1024')
    p(f'ds_read_b128 {V(VF[0], 4)}, {V(vVa0)}')
    p(f'ds_read_b128 {V(VF[0] + 4, 4)}, {V(vVa1)}')
    for i in range(4):
        p(f'v_mov_b32 {V(P + 4 + i)}, 0')
        p(f'v_mov_b32 {V(VF[1] + 4 + i)}, 0')
    p(f'v_mov_b32 {V(SB[1] + 14)}, 0')
    p(f'v_mov_b32 {V(SB[1] + 15)}, 0')
    p('s_waitcnt lgkmcnt(3)')
    p(f'v_mfma_f32_32x32x16_bf16 {V(SB[0], 16)}, {V(KF[0], 4)}, {V(Qf, 4)}, {V(C, 16)}')
    p('s_nop 4')
    p.label('L_f_loop')
    for thr, pr in ((7, 2), (11, 1), (13, 0)):
        p(f's_cmp_lg_u32 {S(sPROG)}, {thr}')
        p(f's_cbranch_scc1 L_f_pr{pr}')
        p(f's_setprio {pr}')
        p.label(f'L_f_pr{pr}')
    p(f's_add_u32 {S(sPROG)}, {S(sPROG)}, 1')
    p(f's_add_u32 {S(sT2)}, {S(sCH)}, 1')
    p(f's_and_b32 {S(sCH)}, {S(sT2)}, 15')
    half_addr(vKn, vVn0, vVn1, sCH)
    NT = 4
    for i in range(NT):
        b = i & 1
        sb, so = SB[b], SB[b ^ 1]
        e = lambda j: p(f'v_exp_f32 {V(sb + j)}, {V(sb + j)}')
        c = lambda j: p(f'v_cvt_pk_bf16_f32 {V(P + j)}, {V(sb + 2 * j)}, {V(sb + 2 * j + 1)}')
        e(0)
        p(f'v_cvt_pk_bf16_f32 {V(P + 7)}, {V(so + 14)}, {V(so + 15)}')
        e(1)
        p('s_waitcnt lgkmcnt(2)')
        p(f'v_mfma_f32_32x32x16_bf16 {V(so, 16)}, {V(KF[b ^ 1], 4)}, {V(Qf, 4)}, {V(C, 16)}')
        if i + 2 < NT:
            p(f'ds_read_b128 {V(KF[b], 4)}, {V(vKa)} offset:{(i + 2) * 1024}')
        else:
            p(f'ds_read_b128 {V(KF[b], 4)}, {V(vKn)} offset:{(i + 2 - NT) * 1024}')
        e(2); e(3); c(0)
        e(4); e(5); c(1)
        p(f'v_mfma_f32_32x32x16_bf16 {V(O, 16)}, {V(VF[b ^ 1] + 4, 4)}, {V(P + 4, 4)}, {V(O, 16)}')
        if i + 1 < NT:
            p(f'ds_read_b128 {V(VF[b ^ 1], 4)}, {V(vVa0)} offset:{(i + 1) * VSTR}')
            p(f'ds_read_b128 {V(VF[b ^ 1] + 4, 4)}, {V(vVa1)} offset:{(i + 1) * VSTR}')
        else:
            p(f'ds_read_b128 {V(VF[b ^ 1], 4)}, {V(vVn0)}')
            p(f'ds_read_b128 {V(VF[b ^ 1] + 4, 4)}, {V(vVn1)}')
        e(6); e(7); c(2)
        e(8); e(9); c(3)
        e(10); e(11)
        p('s_waitcnt lgkmcnt(3)')
        p(f'v_mfma_f32_32x32x16_bf16 {V(O, 16)}, {V(VF[b], 4)}, {V(P, 4)}, {V(O, 16)}')
        c(4)
        e(12); e(13); c(5)
        e(14); e(15); c(6)
    p(f'v_mov_b32 {V(vKa)}, {V(vKn)}')
    p(f'v_mov_b32 {V(vVa0)}, {V(vVn0)}')
    p(f'v_mov_b32 {V(vVa1)}, {V(vVn1)}')
    p(f's_sub_u32 {S(sCNT)}, {S(sCNT)}, 1')
    p(f's_cmp_lg_u32 {S(sCNT)}, 0')
    p('s_cbranch_scc1 L_f_loop')
    p(f'v_cvt_pk_bf16_f32 {V(P + 7)}, {V(SB[1] + 14)}, {V(SB[1] + 15)}')
    p(f'v_mfma_f32_32x32x16_bf16 {V(O, 16)}, {V(VF[1] + 4, 4)}, {V(P + 4, 4)}, {V(O, 16)}')
    p('s_waitcnt lgkmcnt(0)')
    for st in (0, 1, 2, 3, 5):
        p(f's_cmp_eq_u32 {S(sST)}, {st}')
        p(f's_cbranch_scc1 L_f_ret{st}')
    p('s_branch L_f_ret4')

    p.label('L_f_fin')
    stamp(p, 8)
    p(f'v_rcp_f32 {V(vT)}, {V(O + 8)}')
    for i in range(8):
        p(f'v_mul_f32 {V(O + i)}, {V(O + i)}, {V(vT)}')
    for i in range(4):
        p(f'v_cvt_pk_bf16_f32 {V(P + i)}, {V(O + 2 * i)}, {V(O + 2 * i + 1)}')
    p(f's_lshl_b32 {S(sT0)}, {S(sTI)}, 5')
    p(f's_add_u32 {S(sT0)}, {S(sT0)}, {S(sH)}')
    p(f's_lshl_b32 {S(sOFF)}, {S(sT0)}, 10')
    p(f's_add_u32 {S(sT1)}, {S(sOFF)}, {WS_O + 0x200000}')
    p(f'buffer_store_dwordx4 {V(P, 4)}, {V(vL16)}, {S(R_WS, 4)}, {S(sT1)} offen')
    p('s_waitcnt vmcnt(1)')
    for q in (0, 4):
        p(f'v_pk_add_f32 {V(KP + 2 * q, 2)}, {V(KP + 2 * q, 2)}, {V(KP + 2 * q + 2, 2)}')
        p(f'v_pk_add_f32 {V(KP + 2 * q + 4, 2)}, {V(KP + 2 * q + 4, 2)}, {V(KP + 2 * q + 6, 2)}')
        p(f'v_pk_add_f32 {V(KP + 2 * q, 2)}, {V(KP + 2 * q, 2)}, {V(KP + 2 * q + 4, 2)}')
    p(f'v_pk_add_f32 {V(KP, 2)}, {V(KP, 2)}, {V(KP + 8, 2)}')
    p(f'v_cvt_pk_bf16_f32 {V(KP)}, {V(KP)}, {V(KP + 1)}')
    p(f'v_lshlrev_b32 {V(vT + 2)}, 5, {V(vLANE)}')
    p(f'v_add_u32 {V(vT + 2)}, {L_KVS}, {V(vT + 2)}')
    p(f's_lshl_b32 {S(sT0)}, {S(sW)}, 2')
    p(f'v_add_u32 {V(vT + 3)}, {S(sT0)}, {V(vT + 2)}')
    p(f'ds_write_b32 {V(vT + 3)}, {V(KP)}')
    p('s_waitcnt lgkmcnt(0)')
    p('s_barrier')
    p(f'ds_read_b128 {V(KVF, 4)}, {V(vT + 2)}')
    p(f'ds_read_b128 {V(KVF + 4, 4)}, {V(vT + 2)} offset:16')
    p('s_waitcnt lgkmcnt(0)')
    p(f'v_mfma_f32_32x32x16_bf16 {V(SB[1], 16)}, {V(KVF, 4)}, {V(Fp, 4)}, 0')
    p(f'v_mfma_f32_32x32x16_bf16 {V(SB[1], 16)}, {V(KVF + 4, 4)}, {V(Fm, 4)}, {V(SB[1], 16)}')
    p(f'v_add_f32 {V(vT)}, {hex(f2u(1e-6))}, {V(SB[1])}')
    p(f'v_rcp_f32 {V(vT)}, {V(vT)}')
    for i in range(8):
        p(f'v_mul_f32 {V(SB[1] + 8 + i)}, {V(SB[1] + 8 + i)}, {V(vT)}')
    for i in range(4):
        p(f'v_cvt_pk_bf16_f32 {V(P + 4 + i)}, {V(SB[1] + 8 + 2 * i)}, {V(SB[1] + 9 + 2 * i)}')
    p(f's_add_u32 {S(sT1)}, {S(sOFF)}, {WS_O}')
    p(f'buffer_store_dwordx4 {V(P + 4, 4)}, {V(vL16)}, {S(R_WS, 4)}, {S(sT1)} offen')
    stamp_flush(p, 0, TMP, 8)


def gen_k2():
    p = Prog()
    va = RegAlloc('v', 1, 256)
    vLANE = va.alloc()
    vL16 = va.alloc()
    vT = va.alloc(8, 2)
    vPHI = va.alloc(8, 4)
    Qf = va.alloc(4, 4)
    QAf = va.alloc(4, 4)
    Ko = va.alloc(4, 4)
    KP = va.alloc(16, 2)
    C = va.alloc(16, 4)
    SB = [va.alloc(16, 4), va.alloc(16, 4)]
    O = va.alloc(16, 4)
    P = va.alloc(8, 4)
    KF = [va.alloc(4, 4), va.alloc(4, 4)]
    VF = [va.alloc(8, 4), va.alloc(8, 4)]
    vKa, vVa0, vVa1 = va.alloc(), va.alloc(), va.alloc()
    vKn, vVn0, vVn1 = va.alloc(), va.alloc(), va.alloc()
    vVb0, vVb1 = va.alloc(), va.alloc()
    TMP = va.alloc(24, 4)
    Fp, Fm = va.alloc(4, 4), va.alloc(4, 4)
    KVF = va.alloc(8, 4)

    END = 'L_k2_end'
    common_prologue(p, 256, END)
    head_qb(p)
    p(f'v_and_b32 {V(vLANE)}, 63, v0')
    p(f'v_lshrrev_b32 {V(vT)}, 6, v0')
    p(f'v_lshlrev_b32 {V(vL16)}, 4, {V(vLANE)}')
    p(f'v_readfirstlane_b32 {S(sW)}, {V(vT)}')
    p(f's_mov_b32 {S(sL2E)}, {hex(f2u(LOG2E))}')
    p('s_waitcnt lgkmcnt(0)')
    stamp_init(p)
    srd(p, R_WS, P_WS, WS_SIZE)
    srd(p, R_PHI, P_PHI, 16384)
    p(f's_lshl_b32 {S(sT0)}, {S(sQB)}, 3')
    p(f's_add_u32 {S(sTI)}, {S(sT0)}, {S(sW)}')
    p(f's_lshl_b32 {S(sT0)}, {S(sH)}, 6')
    p(f's_add_u32 {S(sT0)}, {S(sT0)}, {S(sTI)}')
    p(f's_lshl_b32 {S(sT0)}, {S(sT0)}, 10')
    p(f'buffer_load_dwordx4 {V(Qf, 4)}, {V(vL16)}, {S(R_WS, 4)}, {S(sT0)} offen')
    p(f's_add_u32 {S(sT1)}, {S(sT0)}, {WS_K}')
    p(f'buffer_load_dwordx4 {V(Ko, 4)}, {V(vL16)}, {S(R_WS, 4)}, {S(sT1)} offen')
    p(f's_lshl_b32 {S(sT2)}, {S(sH)}, 16')
    p(f's_lshl_b32 {S(sT3)}, {S(sW)}, 10')
    p(f's_add_u32 {S(sT2)}, {S(sT2)}, {S(sT3)}')
    p(f's_mul_i32 {S(sOFF2)}, {S(sW)}, {VSTR}')
    for c in range(8):
        p(f's_add_u32 m0, {S(sT3)}, {L_K + c * 8192}')
        p(f's_add_u32 {S(sOFF)}, {S(sT2)}, {WS_K + c * 8192}')
        p(f'buffer_load_dwordx4 {V(vL16)}, {S(R_WS, 4)}, {S(sOFF)} offen lds')
        p(f's_add_u32 m0, {S(sOFF2)}, {L_V + c * 8 * VSTR}')
        p(f's_add_u32 {S(sOFF)}, {S(sT2)}, {WS_V + c * 8192}')
        p(f'buffer_load_dwordx4 {V(vL16)}, {S(R_WS, 4)}, {S(sOFF)} offen lds')
    p(f's_add_u32 {S(sT1)}, {S(sT0)}, {WS_QA}')
    p(f'buffer_load_dwordx4 {V(QAf, 4)}, {V(vL16)}, {S(R_WS, 4)}, {S(sT1)} offen')
    load_wphi(p, vPHI, vT, vLANE)
    p(f'v_lshlrev_b32 {V(vT + 2)}, 3, {V(vLANE)}')
    p(f's_lshl_b32 {S(sT0)}, {S(sH)}, 15')
    p(f's_lshl_b32 {S(sT1)}, {S(sW)}, 9')
    p(f's_add_u32 {S(sT0)}, {S(sT0)}, {S(sT1)}')
    for q in range(8):
        p(f's_add_u32 {S(sT1)}, {S(sT0)}, {WS_KVP + q * 4096}')
        p(f'buffer_load_dwordx2 {V(KP + 2 * q, 2)}, {V(vT + 2)}, {S(R_WS, 4)}, {S(sT1)} offen')
    NLATE = 1 + 8 + 8
    p(f'v_mov_b32 {V(TMP)}, 0x3f803f80')
    p(f'v_mov_b32 {V(TMP + 1)}, 0x3f803f80')
    p(f'v_mov_b32 {V(TMP + 2)}, 0x3f803f80')
    p(f'v_mov_b32 {V(TMP + 3)}, 0x3f803f80')
    p(f'v_mul_u32_u24 {V(vT + 3)}, {VSTR}, {V(vLANE)}')
    p(f'v_add_u32 {V(vT + 3)}, {L_V + 1024}, {V(vT + 3)}')
    p(f'ds_write_b128 {V(vT + 3)}, {V(TMP, 4)}')
    p(f'v_and_b32 {V(vT)}, 15, {V(vLANE)}')
    p(f'v_lshlrev_b32 {V(vT)}, 4, {V(vT)}')
    p(f'v_lshrrev_b32 {V(vT + 1)}, 5, {V(vLANE)}')
    p(f'v_lshl_add_u32 {V(vT)}, {V(vT + 1)}, 8, {V(vT)}')
    p(f'v_add_u32 {V(vT + 1)}, 512, {V(vT)}')
    p(f'v_bfe_u32 {V(vT + 2)}, {V(vLANE)}, 4, 1')
    p(f'v_cmp_eq_u32 vcc, 0, {V(vT + 2)}')
    p(f'v_mov_b32 {V(vT + 3)}, 1024')
    p(f'v_cndmask_b32 {V(vVb0)}, {V(vT + 3)}, {V(vT)}, vcc')
    p(f'v_cndmask_b32 {V(vVb1)}, {V(vT + 3)}, {V(vT + 1)}, vcc')
    p(f's_waitcnt vmcnt({16 + NLATE})')
    p(f'v_mfma_f32_32x32x16_bf16 {V(SB[0], 16)}, {V(Ko, 4)}, {V(Qf, 4)}, 0')

    def rowmax_to(dst, sb, init):
        x = sb
        if init:
            p(f'v_max3_f32 {V(dst)}, {V(x)}, {V(x + 1)}, {V(x + 2)}')
            rest = list(range(3, 16))
        else:
            rest = list(range(16))
        while len(rest) >= 2:
            a, b = rest.pop(0), rest.pop(0)
            p(f'v_max3_f32 {V(dst)}, {V(dst)}, {V(x + a)}, {V(x + b)}')
        if rest:
            p(f'v_max_f32 {V(dst)}, {V(dst)}, {V(x + rest[0])}')

    def set_C(m):
        p(f'v_mov_b32 {V(vT + 1)}, {V(m)}')
        p(f'v_permlane32_swap_b32 {V(m)}, {V(vT + 1)}')
        p(f'v_max_f32 {V(m)}, {V(m)}, {V(vT + 1)}')
        p(f'v_sub_f32 {V(C)}, 0, {V(m)}')
        for i in range(1, 16):
            p(f'v_mov_b32 {V(C + i)}, {V(C)}')

    rowmax_to(vT, SB[0], True)
    set_C(vT)
    p(f's_waitcnt vmcnt({NLATE}) lgkmcnt(0)')
    stamp(p, 1)
    p('s_barrier')
    stamp(p, 2)
    p(f's_mov_b32 {S(sST)}, 0')

    p.label('L_k2_pass')
    p(f's_mov_b32 {S(sCH)}, {S(sQB)}')
    p(f's_mov_b32 {S(sCNT)}, 8')

    def chunk_addr(k, v0, v1, sch):
        p(f's_lshl_b32 {S(sT0)}, {S(sch)}, 13')
        p(f's_mul_i32 {S(sT1)}, {S(sch)}, {8 * VSTR}')
        p(f's_add_u32 {S(sT1)}, {S(sT1)}, {L_V}')
        p(f'v_add_u32 {V(k)}, {S(sT0)}, {V(vL16)}')
        p(f'v_add_u32 {V(v0)}, {S(sT1)}, {V(vVb0)}')
        p(f'v_add_u32 {V(v1)}, {S(sT1)}, {V(vVb1)}')

    chunk_addr(vKa, vVa0, vVa1, sCH)
    p(f'ds_read_b128 {V(KF[0], 4)}, {V(vKa)}')
    p(f'ds_read_b128 {V(KF[1], 4)}, {V(vKa)} offset:1024')
    p(f'ds_read_b128 {V(VF[0], 4)}, {V(vVa0)}')
    p(f'ds_read_b128 {V(VF[0] + 4, 4)}, {V(vVa1)}')
    for i in range(16):
        p(f'v_mov_b32 {V(O + i)}, 0')
    for i in range(4):
        p(f'v_mov_b32 {V(P + 4 + i)}, 0')
        p(f'v_mov_b32 {V(VF[1] + 4 + i)}, 0')
    p(f'v_mov_b32 {V(SB[1] + 14)}, 0')
    p(f'v_mov_b32 {V(SB[1] + 15)}, 0')
    p('s_waitcnt lgkmcnt(3)')
    p(f'v_mfma_f32_32x32x16_bf16 {V(SB[0], 16)}, {V(KF[0], 4)}, {V(Qf, 4)}, {V(C, 16)}')
    p('s_nop 4')
    p.label('L_k2_loop')
    p(f's_add_u32 {S(sT2)}, {S(sCH)}, 1')
    p(f's_and_b32 {S(sCH)}, {S(sT2)}, 7')
    chunk_addr(vKn, vVn0, vVn1, sCH)
    for i in range(8):
        b = i & 1
        sb, so = SB[b], SB[b ^ 1]
        e = lambda j: p(f'v_exp_f32 {V(sb + j)}, {V(sb + j)}')
        c = lambda j: p(f'v_cvt_pk_bf16_f32 {V(P + j)}, {V(sb + 2 * j)}, {V(sb + 2 * j + 1)}')
        e(0)
        p(f'v_cvt_pk_bf16_f32 {V(P + 7)}, {V(so + 14)}, {V(so + 15)}')
        e(1)
        p('s_waitcnt lgkmcnt(2)')
        p(f'v_mfma_f32_32x32x16_bf16 {V(so, 16)}, {V(KF[b ^ 1], 4)}, {V(Qf, 4)}, {V(C, 16)}')
        if i + 2 < 8:
            p(f'ds_read_b128 {V(KF[b], 4)}, {V(vKa)} offset:{(i + 2) * 1024}')
        else:
            p(f'ds_read_b128 {V(KF[b], 4)}, {V(vKn)} offset:{(i + 2 - 8) * 1024}')
        e(2); e(3); c(0)
        e(4); e(5); c(1)
        p(f'v_mfma_f32_32x32x16_bf16 {V(O, 16)}, {V(VF[b ^ 1] + 4, 4)}, {V(P + 4, 4)}, {V(O, 16)}')
        if i + 1 < 8:
            p(f'ds_read_b128 {V(VF[b ^ 1], 4)}, {V(vVa0)} offset:{(i + 1) * VSTR}')
            p(f'ds_read_b128 {V(VF[b ^ 1] + 4, 4)}, {V(vVa1)} offset:{(i + 1) * VSTR}')
        else:
            p(f'ds_read_b128 {V(VF[b ^ 1], 4)}, {V(vVn0)}')
            p(f'ds_read_b128 {V(VF[b ^ 1] + 4, 4)}, {V(vVn1)}')
        e(6); e(7); c(2)
        e(8); e(9); c(3)
        e(10); e(11)
        p('s_waitcnt lgkmcnt(3)')
        p(f'v_mfma_f32_32x32x16_bf16 {V(O, 16)}, {V(VF[b], 4)}, {V(P, 4)}, {V(O, 16)}')
        c(4)
        e(12); e(13); c(5)
        e(14); e(15); c(6)
    p(f'v_mov_b32 {V(vKa)}, {V(vKn)}')
    p(f'v_mov_b32 {V(vVa0)}, {V(vVn0)}')
    p(f'v_mov_b32 {V(vVa1)}, {V(vVn1)}')
    p(f's_sub_u32 {S(sCNT)}, {S(sCNT)}, 1')
    p(f's_cmp_lg_u32 {S(sCNT)}, 0')
    p('s_cbranch_scc1 L_k2_loop')
    p(f'v_cvt_pk_bf16_f32 {V(P + 7)}, {V(SB[1] + 14)}, {V(SB[1] + 15)}')
    p(f'v_mfma_f32_32x32x16_bf16 {V(O, 16)}, {V(VF[1] + 4, 4)}, {V(P + 4, 4)}, {V(O, 16)}')
    p('s_waitcnt lgkmcnt(0)')
    p(f's_cmp_lg_u32 {S(sST)}, 0')
    p('s_cbranch_scc1 L_k2_fin')
    p(f'v_mov_b32 {V(vT)}, {hex(f2u(2.0 ** 64))}')
    p(f's_mov_b32 {S(sT0)}, 0x207')
    p(f'v_cmp_nle_f32 vcc, {V(O + 8)}, {V(vT)}')
    p(f's_mov_b64 {S(sMSK, 2)}, vcc')
    for i in range(8):
        p(f'v_cmp_class_f32 vcc, {V(O + i)}, {S(sT0)}')
        p(f's_or_b64 {S(sMSK, 2)}, {S(sMSK, 2)}, vcc')
    p(f's_cmp_eq_u64 {S(sMSK, 2)}, 0')
    p('s_cbranch_scc1 L_k2_fin')
    p(f's_mov_b32 {S(sST)}, 1')
    p(f's_mov_b32 {S(sCNT)}, 0')
    p(f'v_mov_b32 {V(vT)}, 0xff800000')
    p.label('L_k2_max')
    p(f's_lshl_b32 {S(sT0)}, {S(sCNT)}, 10')
    p(f'v_add_u32 {V(vKa)}, {S(sT0)}, {V(vL16)}')
    p(f'ds_read_b128 {V(KF[0], 4)}, {V(vKa)}')
    p('s_waitcnt lgkmcnt(0)')
    p(f'v_mfma_f32_32x32x16_bf16 {V(SB[0], 16)}, {V(KF[0], 4)}, {V(Qf, 4)}, 0')
    rowmax_to(vT, SB[0], False)
    p(f's_add_u32 {S(sCNT)}, {S(sCNT)}, 1')
    p(f's_cmp_lt_u32 {S(sCNT)}, 64')
    p('s_cbranch_scc1 L_k2_max')
    set_C(vT)
    p('s_branch L_k2_pass')

    p.label('L_k2_fin')
    stamp(p, 3)
    p(f'v_rcp_f32 {V(vT)}, {V(O + 8)}')
    for i in range(8):
        p(f'v_mul_f32 {V(O + i)}, {V(O + i)}, {V(vT)}')
    for i in range(4):
        p(f'v_cvt_pk_bf16_f32 {V(P + i)}, {V(O + 2 * i)}, {V(O + 2 * i + 1)}')
    p(f's_lshl_b32 {S(sT0)}, {S(sTI)}, 5')
    p(f's_add_u32 {S(sT0)}, {S(sT0)}, {S(sH)}')
    p(f's_lshl_b32 {S(sOFF)}, {S(sT0)}, 10')
    p(f's_add_u32 {S(sT1)}, {S(sOFF)}, {WS_O + 0x200000}')
    p(f'buffer_store_dwordx4 {V(P, 4)}, {V(vL16)}, {S(R_WS, 4)}, {S(sT1)} offen')
    p('s_waitcnt vmcnt(1)')
    combine8(p, vPHI)
    p(f'v_mfma_f32_32x32x16_bf16 {V(SB[0], 16)}, {V(vPHI, 4)}, {V(QAf, 4)}, 0')
    for q in (0, 4):
        p(f'v_pk_add_f32 {V(KP + 2 * q, 2)}, {V(KP + 2 * q, 2)}, {V(KP + 2 * q + 2, 2)}')
        p(f'v_pk_add_f32 {V(KP + 2 * q + 4, 2)}, {V(KP + 2 * q + 4, 2)}, {V(KP + 2 * q + 6, 2)}')
        p(f'v_pk_add_f32 {V(KP + 2 * q, 2)}, {V(KP + 2 * q, 2)}, {V(KP + 2 * q + 4, 2)}')
    p(f'v_pk_add_f32 {V(KP, 2)}, {V(KP, 2)}, {V(KP + 8, 2)}')
    p(f'v_cvt_pk_bf16_f32 {V(KP)}, {V(KP)}, {V(KP + 1)}')
    p(f'v_lshlrev_b32 {V(vT + 2)}, 5, {V(vLANE)}')
    p(f'v_add_u32 {V(vT + 2)}, {L_KVS}, {V(vT + 2)}')
    p(f's_lshl_b32 {S(sT0)}, {S(sW)}, 2')
    p(f'v_add_u32 {V(vT + 3)}, {S(sT0)}, {V(vT + 2)}')
    p(f'ds_write_b32 {V(vT + 3)}, {V(KP)}')
    softmax_pair(p, SB[0], Fp, Fm, TMP)
    p('s_waitcnt lgkmcnt(0)')
    p('s_barrier')
    p(f'ds_read_b128 {V(KVF, 4)}, {V(vT + 2)}')
    p(f'ds_read_b128 {V(KVF + 4, 4)}, {V(vT + 2)} offset:16')
    p('s_waitcnt lgkmcnt(0)')
    p(f'v_mfma_f32_32x32x16_bf16 {V(SB[1], 16)}, {V(KVF, 4)}, {V(Fp, 4)}, 0')
    p(f'v_mfma_f32_32x32x16_bf16 {V(SB[1], 16)}, {V(KVF + 4, 4)}, {V(Fm, 4)}, {V(SB[1], 16)}')
    p(f'v_add_f32 {V(vT)}, {hex(f2u(1e-6))}, {V(SB[1])}')
    p(f'v_rcp_f32 {V(vT)}, {V(vT)}')
    for i in range(8):
        p(f'v_mul_f32 {V(SB[1] + 8 + i)}, {V(SB[1] + 8 + i)}, {V(vT)}')
    for i in range(4):
        p(f'v_cvt_pk_bf16_f32 {V(P + 4 + i)}, {V(SB[1] + 8 + 2 * i)}, {V(SB[1] + 9 + 2 * i)}')
    p(f's_add_u32 {S(sT1)}, {S(sOFF)}, {WS_O}')
    p(f'buffer_store_dwordx4 {V(P + 4, 4)}, {V(vL16)}, {S(R_WS, 4)}, {S(sT1)} offen')
    stamp_flush(p, 1, TMP, 8)
    p.label(END)
    p('s_endpgm')
    return p


K3_RS = 272
K3_PART = 64 * K3_RS
LDS3 = 4 * K3_PART


def gen_k3(kidx=2):
    p = Prog()
    va = RegAlloc('v', 1, 256)
    vLANE = va.alloc()
    vL16 = va.alloc()
    vT = va.alloc(8, 2)
    vG = va.alloc(2)
    NB = 12
    FRB = va.alloc(16 * NB, 4)
    RD = FRB
    END = 'L_k3_end'
    common_prologue(p, 256, END)
    p(f's_and_b32 {S(sT0)}, {S(sWG)}, 7')
    p(f's_lshr_b32 {S(sT1)}, {S(sWG)}, 3')
    p(f's_lshl_b32 {S(sH)}, {S(sT0)}, 2')
    p(f's_and_b32 {S(sT2)}, {S(sT1)}, 3')
    p(f's_add_u32 {S(sH)}, {S(sH)}, {S(sT2)}')
    p(f's_lshr_b32 {S(sQB)}, {S(sT1)}, 2')
    p(f'v_and_b32 {V(vLANE)}, 63, v0')
    p(f'v_lshrrev_b32 {V(vT)}, 6, v0')
    p(f'v_lshlrev_b32 {V(vL16)}, 4, {V(vLANE)}')
    p(f'v_readfirstlane_b32 {S(sW)}, {V(vT)}')
    p('s_waitcnt lgkmcnt(0)')
    stamp_init(p)
    srd(p, R_WS, P_WS, WS_SIZE)
    srd(p, R_OUT, P_OUT, 2048 * 1024)
    p(f's_lshr_b32 {S(sT0)}, {S(sW)}, 1')
    p(f's_and_b32 {S(sT1)}, {S(sW)}, 1')
    sOB, sWB = 84, 85
    p(f's_lshl_b32 {S(sOB)}, {S(sT0)}, 21')
    p(f's_lshl_b32 {S(sT2)}, {S(sH)}, 16')
    p(f's_add_u32 {S(sOB)}, {S(sOB)}, {S(sT2)}')
    p(f's_lshl_b32 {S(sT2)}, {S(sT1)}, 14')
    p(f's_add_u32 {S(sOB)}, {S(sOB)}, {S(sT2)}')
    p(f's_add_u32 {S(sOB)}, {S(sOB)}, {WS_O}')
    p(f's_lshl_b32 {S(sWB)}, {S(sT0)}, 19')
    p(f's_lshl_b32 {S(sT2)}, {S(sT1)}, 18')
    p(f's_add_u32 {S(sWB)}, {S(sWB)}, {S(sT2)}')
    p(f's_lshl_b32 {S(sT2)}, {S(sQB)}, 11')
    p(f's_add_u32 {S(sWB)}, {S(sWB)}, {S(sT2)}')
    p(f's_add_u32 {S(sWB)}, {S(sWB)}, {WS_WO}')

    def loads(k):
        F = FRB + 16 * (k % NB)
        p(f's_add_u32 {S(sOFF)}, {S(sOB)}, {k * 1024}')
        p(f's_add_u32 {S(sOFF2)}, {S(sWB)}, {k * 16384}')
        p(f'buffer_load_dwordx4 {V(F, 4)}, {V(vL16)}, {S(R_WS, 4)}, {S(sOFF)} offen')
        p(f'buffer_load_dwordx4 {V(F + 8, 4)}, {V(vL16)}, {S(R_WS, 4)}, {S(sOFF2)} offen')
        p(f's_add_u32 {S(sOFF)}, {S(sOB)}, {k * 1024 + 32768}')
        p(f'buffer_load_dwordx4 {V(F + 12, 4)}, {V(vL16)}, {S(R_WS, 4)}, {S(sOFF2)} offen offset:1024')
        p(f'buffer_load_dwordx4 {V(F + 4, 4)}, {V(vL16)}, {S(R_WS, 4)}, {S(sOFF)} offen')

    p(f'v_and_b32 {V(vT)}, 31, {V(vLANE)}')
    p(f'v_lshlrev_b32 {V(vT)}, 2, {V(vT)}')
    p(f's_lshl_b32 {S(sT2)}, {S(sH)}, 8')
    p(f's_add_u32 {S(sT2)}, {S(sT2)}, {WS_G}')
    p(f'buffer_load_dword {V(vG)}, {V(vT)}, {S(R_WS, 4)}, {S(sT2)} offen')
    p(f'buffer_load_dword {V(vG + 1)}, {V(vT)}, {S(R_WS, 4)}, {S(sT2)} offen offset:128')
    for k in range(NB):
        loads(k)
    stamp(p, 1)
    for k in range(16):
        issued = min(16, NB + k)
        p(f's_waitcnt vmcnt({4 * (issued - k - 1)})')
        F = FRB + 16 * (k % NB)
        for rt in range(2):
            for ct in range(2):
                acc = (rt * 2 + ct) * 16
                c = '0' if k == 0 else A(acc, 16)
                p(f'v_mfma_f32_32x32x16_bf16 {A(acc, 16)}, {V(F + 8 + 4 * ct, 4)}, {V(F + 4 * rt, 4)}, {c}')
        if k + NB < 16:
            loads(k + NB)
    stamp(p, 2)
    p(f'v_sub_f32 {V(vT)}, 1.0, {V(vG)}')
    p(f'v_sub_f32 {V(vT + 1)}, 1.0, {V(vG + 1)}')
    p(f'v_cvt_pk_bf16_f32 {V(vT + 2)}, {V(vT)}, {V(vT + 1)}')
    p(f'v_lshlrev_b32 {V(vT)}, 16, {V(vT + 2)}')
    p(f'v_and_b32 {V(vT + 1)}, 0xffff0000, {V(vT + 2)}')
    p(f's_cmp_eq_u32 {S(sT0)}, 0')
    p(f's_cselect_b64 {S(sMSK, 2)}, -1, 0')
    p(f'v_cndmask_b32 {V(vG)}, {V(vT)}, {V(vG)}, {S(sMSK, 2)}')
    p(f'v_cndmask_b32 {V(vG + 1)}, {V(vT + 1)}, {V(vG + 1)}, {S(sMSK, 2)}')
    p(f'v_and_b32 {V(vT)}, 31, {V(vLANE)}')
    p(f'v_mul_u32_u24 {V(vT)}, {K3_RS}, {V(vT)}')
    p(f'v_lshrrev_b32 {V(vT + 1)}, 5, {V(vLANE)}')
    p(f'v_lshl_add_u32 {V(vT)}, {V(vT + 1)}, 4, {V(vT)}')
    p(f's_mul_i32 {S(sT2)}, {S(sW)}, {K3_PART}')
    p(f'v_add_u32 {V(vT)}, {S(sT2)}, {V(vT)}')
    for rt in range(2):
        for ct in range(2):
            acc = (rt * 2 + ct) * 16
            for r in range(16):
                p(f'v_accvgpr_read_b32 {V(RD + acc + r)}, {A(acc + r)}')
            for r in range(16):
                p(f'v_mul_f32 {V(RD + acc + r)}, {V(RD + acc + r)}, {V(vG + rt)}')
            for q in range(4):
                p(f'ds_write_b128 {V(vT)}, {V(RD + acc + 4 * q, 4)} offset:{rt * 32 * K3_RS + ct * 128 + q * 32}')
    p('s_waitcnt lgkmcnt(0)')
    p('s_barrier')
    stamp(p, 3)
    p(f'v_lshrrev_b32 {V(vT)}, 2, v0')
    p(f'v_and_b32 {V(vT + 1)}, 3, v0')
    p(f'v_mul_u32_u24 {V(vT + 2)}, {K3_RS}, {V(vT)}')
    p(f'v_lshl_add_u32 {V(vT + 2)}, {V(vT + 1)}, 6, {V(vT + 2)}')
    for w in range(4):
        for q in range(4):
            p(f'ds_read_b128 {V(RD + w * 16 + q * 4, 4)}, {V(vT + 2)} offset:{w * K3_PART + q * 16}')
    p(f'v_lshlrev_b32 {V(vT + 3)}, 10, {V(vT)}')
    p(f'v_lshl_add_u32 {V(vT + 3)}, {V(vT + 1)}, 5, {V(vT + 3)}')
    p(f's_lshl_b32 {S(sT2)}, {S(sH)}, 16')
    p(f's_lshl_b32 {S(sT3)}, {S(sQB)}, 7')
    p(f's_add_u32 {S(sT2)}, {S(sT2)}, {S(sT3)}')
    p('s_waitcnt lgkmcnt(8)')
    for i in range(8):
        p(f'v_pk_add_f32 {V(RD + 2 * i, 2)}, {V(RD + 2 * i, 2)}, {V(RD + 16 + 2 * i, 2)}')
    p('s_waitcnt lgkmcnt(0)')
    for i in range(8):
        p(f'v_pk_add_f32 {V(RD + 32 + 2 * i, 2)}, {V(RD + 32 + 2 * i, 2)}, {V(RD + 48 + 2 * i, 2)}')
    for i in range(8):
        p(f'v_pk_add_f32 {V(RD + 2 * i, 2)}, {V(RD + 2 * i, 2)}, {V(RD + 32 + 2 * i, 2)}')
    for i in range(8):
        p(f'v_cvt_pk_bf16_f32 {V(RD + 64 + i)}, {V(RD + 2 * i)}, {V(RD + 2 * i + 1)}')
    p(f'buffer_store_dwordx4 {V(RD + 64, 4)}, {V(vT + 3)}, {S(R_OUT, 4)}, {S(sT2)} offen')
    p(f'buffer_store_dwordx4 {V(RD + 68, 4)}, {V(vT + 3)}, {S(R_OUT, 4)}, {S(sT2)} offen offset:16')
    stamp_flush(p, kidx, RD + 80, 4)
    p.label(END)
    p('s_endpgm')
    return p


HEADER = '''; Kernarg layout for this problem (88 bytes, ptrs only, base s[0:1]):
'''


def build(kernels, path):
    s = HEADER
    for (name, prog, grid, block, lds) in kernels:
        s += f'; @launch kernel={name} grid=({grid},1,1) block=({block},1,1) lds={lds}\n'
    s += '.amdgcn_target "amdgcn-amd-amdhsa--gfx950"\n.text\n'
    for (name, prog, grid, block, lds) in kernels:
        prog.hazard_pass(verbose=bool(os.environ.get('HZV')))
        mv, ma, ms = prog.max_regs()
        print(f'{name}: {len(prog.ins)} lines, vgpr {mv + 1}, agpr {ma + 1}, sgpr {ms + 1}, auto nops {prog.nops_added}')
        s += f'.globl {name}\n.p2align 8\n.type {name},@function\n{name}:\n'
        s += prog.text()
        s += kernel_desc(name, mv + 1, ma + 1, min(102, ms + 1))
    open(path, 'w').write(s)


if __name__ == '__main__':
    out = sys.argv[1] if len(sys.argv) > 1 else f'cdna_kernels/{NAME}.s'
    if os.environ.get('SEP'):
        build([
            ('k1_qkv_kernel', gen_k1(), 256, 512, LDS1),
            ('k2_attn_kernel', gen_k2(), 256, 512, LDS2),
            ('k3_out_kernel', gen_k3(), 256, 256, LDS3),
        ], out)
    else:
        build([
            ('k12_fused_kernel', gen_k1(fused=True), 256, 512, LDS12),
            ('k3_out_kernel', gen_k3(1), 256, 256, LDS3),
        ], out)
```
